```python
import torch

def _softmax(x, axis=-1):
    return torch.softmax(x, dim=axis)

def _gelu(x):
    return torch.nn.functional.gelu(x, approximate='tanh')

def _silu(x):
    return torch.nn.functional.silu(x)

def _sigmoid(x):
    return torch.sigmoid(x)

def _layernorm(x, axis=-1, eps=1e-05):
    m = x.mean(dim=axis, keepdim=True)
    v = x.var(dim=axis, keepdim=True, unbiased=False)
    return (x - m) / torch.sqrt(v + eps)

def _scatter_add(tgt, idx, src, axis=0):
    return tgt.clone().index_add_(axis, idx, src)

def _segment_sum(src, seg, n):
    out = torch.zeros((n,) + src.shape[1:], dtype=src.dtype)
    return out.index_add_(0, seg, src)

def _pad(x, pw):
    flat = tuple((v for pair in reversed(pw) for v in pair))
    return torch.nn.functional.pad(x, flat)
kernel_name = 'interleave_layers__memory_aug_recurrent_mem_tr__ssm_conv_h3__prompt'

def setup_inputs():

    _w = lambda a: (lambda t: t.to(torch.bfloat16) if t.is_floating_point() else t)(torch.as_tensor(a))

    def _A_setup():
        B, S, Dm = (1, 2048, 640)
        H, Dh = (32, 128)
        M, seg = (8, 32)
        seg = min(seg, S)
        S = S // seg * seg
        return {'x': _w((lambda *s: torch.randn(*s, dtype=torch.bfloat16) * 0.05)(B, S, Dm)), 'mem0': _w((lambda *s: torch.randn(*s, dtype=torch.bfloat16) * 0.4)(B, M, Dm)), 'Wq': _w((lambda *s: torch.randn(*s, dtype=torch.bfloat16) * 1.6)(Dm, H, Dh) * Dm ** (-0.5)), 'Wk': _w((lambda *s: torch.randn(*s, dtype=torch.bfloat16) * 1.6)(Dm, H, Dh) * Dm ** (-0.5)), 'Wv': _w((lambda *s: torch.randn(*s, dtype=torch.bfloat16) * 0.4)(Dm, H, Dh) * Dm ** (-0.5)), 'Wo': _w((lambda *s: torch.randn(*s, dtype=torch.bfloat16) * 0.4)(H, Dh, Dm) * (H * Dh) ** (-0.5)), 'seg_len': seg}
    _A_in = _A_setup()

    def _B_setup():
        B, S, D = (1, 2048, 640)
        ks = 4
        return {'q': _w((lambda *s: torch.randn(*s, dtype=torch.bfloat16) * 0.05)(B, S, D)), 'k': _w((lambda *s: torch.randn(*s, dtype=torch.bfloat16) * 0.4)(B, S, D)), 'v': _w((lambda *s: torch.randn(*s, dtype=torch.bfloat16) * 0.4)(B, S, D)), 'shift_k': _w((lambda *s: torch.randn(*s, dtype=torch.bfloat16) * 0.4)(D, ks) * 0.5), 'ssm_k': _w((lambda *s: torch.randn(*s, dtype=torch.bfloat16) * 0.8)(D, S) * (1.0 / S ** 0.5)), 'ssm_D': _w((lambda *s: torch.randn(*s, dtype=torch.bfloat16) * 0.4)(D))}
    _B_in = _B_setup()
    return {'A_x': _A_in['x'], 'A_mem0': _A_in['mem0'], 'A_Wq': _A_in['Wq'], 'A_Wk': _A_in['Wk'], 'A_Wv': _A_in['Wv'], 'A_Wo': _A_in['Wo'], 'A_seg_len': _A_in['seg_len'], 'B_q': _B_in['q'], 'B_k': _B_in['k'], 'B_v': _B_in['v'], 'B_shift_k': _B_in['shift_k'], 'B_ssm_k': _B_in['ssm_k'], 'B_ssm_D': _B_in['ssm_D']}

def reference(A_x, A_mem0, A_Wq, A_Wk, A_Wv, A_Wo, A_seg_len, B_q, B_k, B_v, B_shift_k, B_ssm_k, B_ssm_D):

    def _A_ref(x, mem0, Wq, Wk, Wv, Wo, seg_len):
        B, S, Dm = x.shape
        H, Dh = (Wq.shape[1], Wq.shape[2])
        M = mem0.shape[1]
        scale = Dh ** (-0.5)
        n_seg = S // seg_len
        L = M + seg_len
        idx = torch.arange(L)
        mask = (idx[:, None] < M) | (idx[:, None] >= idx[None, :])
        mem = mem0
        outs = []
        for s in range(n_seg):
            xs = x[:, s * seg_len:(s + 1) * seg_len, :].clone()
            h = torch.concatenate([mem, xs], axis=1)
            q = torch.einsum('btd,dhe->bhte', h, Wq)
            k = torch.einsum('btd,dhe->bhte', h, Wk)
            v = torch.einsum('btd,dhe->bhte', h, Wv)
            scores = torch.einsum('bhqe,bhke->bhqk', q, k) * scale
            scores = torch.where(mask[None, None], scores, -1000000000.0)
            p = _softmax(scores, axis=-1)
            o = torch.einsum('bhqk,bhke->bhqe', p, v)
            o = torch.einsum('bhte,hed->btd', o, Wo)
            mem = o[:, :M, :].clone()
            outs.append(o[:, M:, :])
        return torch.concatenate(outs, axis=1)

    def _B_ref(q, k, v, shift_k, ssm_k, ssm_D):
        B, S, D = q.shape
        ks = shift_k.shape[-1]
        k_pad = _pad(k, ((0, 0), (ks - 1, 0), (0, 0)))
        k_shift = torch.zeros_like(k)
        for t in range(ks):
            k_shift = k_shift + k_pad[:, t:t + S, :] * shift_k[:, ks - 1 - t][None, None, :]
        kv = k_shift * v
        L = 2 * S
        kv_pad = _pad(kv, ((0, 0), (0, S), (0, 0)))
        kf_pad = _pad(ssm_k, ((0, 0), (0, S)))
        kv_f = (lambda x, axes=(-2, -1): torch.fft.rfft2(x.float(), dim=axes))(kv_pad[:, None, :, :], axes=(1, 2))
        kf_f = (lambda x, axes=(-2, -1): torch.fft.rfft2(x.float(), dim=axes))(kf_pad[:, None, :], axes=(1, 2))
        kf_f = (lambda x, *d: x.permute(*d))(kf_f, 1, 2, 0)
        y_f = kv_f * kf_f[None, :, :, :]
        y = (lambda x, s, axes=(-2, -1): torch.fft.irfft2(x, s=s, dim=axes).to(torch.bfloat16))(y_f, (1, L), axes=(1, 2))[:, 0, :S, :]
        y = y + kv * ssm_D[None, None, :]
        return q * y
    x = A_x
    x = x + _A_ref(_layernorm(x, axis=-1), A_mem0, A_Wq, A_Wk, A_Wv, A_Wo, A_seg_len)
    x = x + _B_ref(_layernorm(x, axis=-1), B_k, B_v, B_shift_k, B_ssm_k, B_ssm_D)
    x = x + _A_ref(_layernorm(x, axis=-1), A_mem0, A_Wq, A_Wk, A_Wv, A_Wo, A_seg_len)
    x = x + _B_ref(_layernorm(x, axis=-1), B_k, B_v, B_shift_k, B_ssm_k, B_ssm_D)
    return x
```

```python
class G:
    def __init__(self):
        self.lines=[]; self.n=0
    amf=False; last_mf=False
    def __call__(self, s):
        for l in s.strip("\n").split("\n"):
            mf=l.strip().startswith("v_mfma")
            if self.amf and mf and not self.last_mf: self.lines.append(".p2align 3")
            self.last_mf=mf
            self.lines.append(" "+l.strip())
    def label(self,l): self.lines.append(l+":")
    def raw(self,s): self.lines.append(s)
    def uniq(self,p):
        self.n+=1; return f"L_{p}_{self.n}"
    def text(self): return "\n".join(self.lines)+"\n"

def vr(a,n=1): return f"v{a}" if n==1 else f"v[{a}:{a+n-1}]"
def ar(a,n=1): return f"a{a}" if n==1 else f"a[{a}:{a+n-1}]"
def sr(a,n=1): return f"s{a}" if n==1 else f"s[{a}:{a+n-1}]"

def interleave(g, main, fill, per=1, start=0):
    fill=list(fill)
    for i,m in enumerate(main):
        g(m)
        if i>=start:
            for _ in range(per):
                if fill: g(fill.pop(0))
    for f in fill: g(f)

def srd(g, d, base, nbytes):
    g(f"s_mov_b32 s{d}, s{base}")
    g(f"s_and_b32 s{d+1}, s{base+1}, 0xffff")
    g(f"s_mov_b32 s{d+2}, {nbytes}")
    g(f"s_mov_b32 s{d+3}, 0x00020000")

def kdesc(name, vgpr=512, accum=256, sgpr=102):
    return f""".section .rodata,"a"
.p2align 6
.amdhsa_kernel {name}
  .amdhsa_next_free_vgpr {vgpr}
  .amdhsa_next_free_sgpr {sgpr}
  .amdhsa_accum_offset {accum}
  .amdhsa_group_segment_fixed_size 0
  .amdhsa_kernarg_size 128
  .amdhsa_user_sgpr_count 2
  .amdhsa_user_sgpr_kernarg_segment_ptr 1
  .amdhsa_system_sgpr_workgroup_id_x 1
  .amdhsa_float_denorm_mode_32 3
.end_amdhsa_kernel
.text
"""

def tl(g, on, base, sIdx, ev, vT=255):
    if not on: return
    g("s_memrealtime s[98:99]"); g(f"s_lshl_b32 s100, s{sIdx}, 5"); g(f"s_add_u32 s100, s100, {base+4*ev}"); g("s_waitcnt lgkmcnt(0)")
    g(f"v_mov_b32 v{vT}, s98"); g("s_mov_b64 exec, 1"); g(f"buffer_store_dword v{vT}, off, s[4:7], s100"); g("s_mov_b64 exec, -1")
```

```python
from asmlib import *
from layout import *
from chain import WS,WT,sX,sTK,sW,sTO,sPAR,timeout,dma_rows64,dma_voff,fl_voff,fl_dma,MF,q4,f32bits
import math
MF32="v_mfma_f32_32x32x16_bf16"
W2="s[12:15]"
TRACE=[False]
OPT={}
def trace(g, sItem, ev, vT):
    if not TRACE[0]: return
    g(f"s_memrealtime s[{84+2*ev}:{85+2*ev}]")
    g("s_waitcnt lgkmcnt(0)")
def tflush(g, sItem, v8):
    if not TRACE[0]: return
    g(f"s_lshl_b32 s96, s{sX}, 5"); g(f"s_add_u32 s96, s96, s{sTK}"); g("s_lshl_b32 s96, s96, 2"); g(f"s_add_u32 s96, s96, s{sW}")
    g("s_mul_i32 s96, s96, 80"); g(f"s_add_u32 s96, s96, s{sItem}"); g("s_lshl_b32 s96, s96, 5"); g(f"s_add_u32 s96, s96, {DBG2}")
    for i in range(6): g(f"v_mov_b32 v{v8+i}, s{84+2*i}")
    g("s_mov_b64 exec, 1")
    g(f"buffer_store_dwordx4 v[{v8}:{v8+3}], off, {WS}, s96")
    g(f"buffer_store_dwordx2 v[{v8+4}:{v8+5}], off, {WS}, s96 offset:16")
    g("s_mov_b64 exec, -1")

def tr32_addr(g, vD, vT):
    g(f"v_lshrrev_b32 v{vD}, 5, v0")
    g(f"v_lshlrev_b32 v{vD}, 8, v{vD}")
    g(f"v_and_b32 v{vT}, 12, v0")
    g(f"v_lshl_add_u32 v{vD}, v{vT}, 4, v{vD}")
    g(f"v_and_b32 v{vT}, 3, v0")
    g(f"v_lshl_add_u32 v{vD}, v{vT}, 3, v{vD}")
    g(f"v_lshrrev_b32 v{vT}, 1, v0")
    g(f"v_xor_b32 v{vT}, v{vT}, v0")
    g(f"v_and_b32 v{vT}, 16, v{vT}")
    g(f"v_lshl_add_u32 v{vD}, v{vT}, 1, v{vD}")

def load_w32(g, nst, row_stride, sA, sLB, vOff, vA, vT, sRot, phase=None):
    if phase!=1:
        fl_voff(g, vOff, vT, row_stride, 256)
        g(f"s_lshl_b32 s{sLB}, s{sW}, 13")
        g(f"s_mul_i32 s3, s{sW}, {32*row_stride}"); g(f"s_add_u32 s{sA}, s{sA}, s3")
        for B in range(nst):
            g(f"s_mul_i32 s{sTO}, s{sRot+B}, {128*row_stride}"); g(f"s_add_u32 s{sTO}, s{sTO}, s{sA}")
            fl_dma(g, vOff, sTO, 8, 4*row_stride, sLB, B*32768, two=True)
    if phase==0: return
    g(f"v_lshrrev_b32 v{vA}, 3, v0"); g(f"v_and_b32 v{vA}, 4, v{vA}"); g(f"v_bfe_u32 v{vT}, v0, 2, 2"); g(f"v_or_b32 v{vA}, v{vA}, v{vT}")
    g(f"v_bfe_u32 v{vT}, v0, 4, 1"); g(f"v_xor_b32 v{vT}, v{vT}, v{vA}"); g(f"s_lshl_b32 s3, s{sW}, 1"); g(f"v_xor_b32 v{vT}, s3, v{vT}")
    g(f"v_lshlrev_b32 v{vA}, 8, v{vA}"); g(f"v_lshl_add_u32 v{vA}, v{vT}, 5, v{vA}")
    g(f"v_and_b32 v{vT}, 3, v0"); g(f"v_lshl_add_u32 v{vA}, v{vT}, 3, v{vA}")
    for B in range(nst):
        g(f"s_waitcnt vmcnt({8*(nst-1-B)})"); g("s_barrier")
        for f in range(4):
            for gp in range(2):
                r=32*B+8*f+4*gp
                g(f"ds_read_b64_tr_b16 a[{r}:{r+1}], v{vA} offset:{f*8192+gp*2048}")
                g(f"ds_read_b64_tr_b16 a[{r+2}:{r+3}], v{vA} offset:{f*8192+gp*2048+4096}")
        g(f"v_add_u32 v{vA}, 0x8000, v{vA}")
    g("s_waitcnt lgkmcnt(0)")
    g("s_barrier")
    tl(g,TRACE[0],DBG3+16384,101,1)

def rot_table(g, sRot, sSrc, nst):
    for B in range(nst):
        g(f"s_add_u32 s{sRot+B}, s{sSrc}, {B}")
        g(f"s_sub_u32 s3, s{sRot+B}, {nst}")
        g(f"s_cmp_ge_u32 s{sRot+B}, {nst}"); g(f"s_cselect_b32 s{sRot+B}, s3, s{sRot+B}")

def gemm_stream(g, nst, Rd, Mf, staged, hooks={}, extra=(), every=3):
    K=8*nst; LA=4; extra=list(extra); n=[0]
    def Wt(B):
        if staged:
            g(f"s_waitcnt vmcnt({2*(nst-1-B)+n[0]})"); g("s_barrier")
    Wt(0)
    for k in range(LA): g(Rd(k))
    for k in range(K):
        if k in hooks: hooks[k]()
        g(f"s_waitcnt lgkmcnt({min(LA,K-k)-1})")
        if OPT.get("nomf")==2 and k>0:
            import re
            m=re.match(r"\S+ v\[(\d+):\d+\], (\S+), (\S+), .*",Mf(k)); c=int(m.group(1))+8*(k&1)
            g(f"{MF} {q4('v',c)}, {m.group(2)}, {m.group(3)}, {q4('v',c)}"); g(f"{MF} {q4('v',c+4)}, {m.group(3)}, {m.group(2)}, {q4('v',c+4)}")
        else: g("s_nop 6" if (OPT.get("nomf") and k>0) else Mf(k))
        if OPT.get("slow") and not staged: g(f"s_nop {OPT['slow']}")
        r=k+LA
        if r<K:
            if r%8==0: Wt(r//8)
            g(Rd(r))
        if extra and k%every==0:
            g(extra.pop(0)); n[0]+=1
    assert not extra

L_FLAG=163840-64

def flag_store(g, vT, sAddr, sVal, fl=" sc1"):
    g(f"v_mov_b32 v{vT}, s{sVal}")
    g("s_mov_b64 exec, 1")
    g(f"buffer_store_dword v{vT}, off, {WS}, s{sAddr}{fl}")
    g("s_mov_b64 exec, -1")

sSlow=80
def lflag_store(g, vT, sAddr, sVal):
    l1=g.uniq("lf"); l2=g.uniq("lf")
    g(f"s_cmp_lg_u32 s{sSlow}, 0"); g(f"s_cbranch_scc1 {l1}")
    flag_store(g,vT,sAddr,sVal,""); g(f"s_branch {l2}")
    g.label(l1); flag_store(g,vT,sAddr,sVal," sc1"); g.label(l2)

def group_local(g, v):
    import pre
    pre.dbsrd(g)
    lp=g.uniq("gl"); ld=g.uniq("gld")
    g(f"v_lshlrev_b32 v{v}, 5, v0"); g(f"s_mov_b32 s{sTO}, 0")
    g.label(lp)
    g(f"buffer_load_dword v{v+1}, v{v}, {pre.DB}, 0 offen sc1")
    g("s_waitcnt vmcnt(0)")
    g(f"v_readlane_b32 s3, v{v+1}, s{sX}"); g(f"s_mov_b32 s{sSlow}, {1 if OPT.get('force_slow') else 0}"); g("s_nop 2")
    g("s_cmp_ge_u32 s3, 32"); g(f"s_cbranch_scc1 {ld}")
    g(f"s_mov_b32 s{sSlow}, 0")
    for i in range(8):
        g(f"v_readlane_b32 s3, v{v+1}, {i}"); g("s_nop 3"); g(f"s_add_u32 s{sSlow}, s{sSlow}, s3")
    g(f"s_cmp_ge_u32 s{sSlow}, 256"); g(f"s_cbranch_scc1 {ld}")
    g("s_sleep 4")
    timeout(g, lp)
    g.label(ld)

sN0,sN1=78,79
def near_setup(g, v, have=False):
    import pre
    if not have: pre.wait_bar(g,*pre.BA,v,par=True)
    g(f"s_xor_b32 s{sN0}, s{sPAR}, {((PROBE>>21)^OPT.get('cfar',0))&1}"); g(f"s_lshl_b32 s{sN0}, s{sN0}, 13"); g(f"s_xor_b32 s{sN1}, s{sN0}, 8192")
def blk(g, sD, sSeg, sBase, far, sN=None):
    g(f"s_lshl_b32 s{sD}, s{sSeg}, 19"); g(f"s_add_u32 s{sD}, s{sD}, s{sBase}")
    if sN is not None: g(f"s_xor_b32 s{sD}, s{sD}, s{sN}")
    elif far: g(f"s_xor_b32 s{sD}, s{sD}, 8192")
def hblk(g, sD, sH):
    g(f"s_and_b32 s100, s{sH}, 1"); g("s_lshl_b32 s100, s100, 13"); g(f"s_lshl_b32 s{sD}, s{sH}, 14"); g(f"s_add_u32 s{sD}, s{sD}, s100")
def spread_s(g, s):
    g(f"s_lshr_b32 s100, s{s}, 13"); g("s_lshl_b32 s100, s100, 13"); g(f"s_add_u32 s{s}, s{s}, s100")
def spread_v(g, v, t):
    g(f"v_and_b32 v{t}, 0xffffe000, v{v}"); g(f"v_add_u32 v{v}, v{v}, v{t}")

def poll_ge(g, vD, vAddr, sOff, need, mask=None, sleep=2):
    lp=g.uniq("pl"); ld=g.uniq("pld")
    g(f"s_mov_b32 s{sTO}, 0")
    if mask: g(f"s_mov_b64 exec, {mask}")
    g.label(lp)
    g(f"buffer_load_dword v{vD}, v{vAddr}, {WS}, {sOff} offen sc1")
    g("s_waitcnt vmcnt(0)")
    g(f"v_cmp_gt_u32 vcc, {need}, v{vD}")
    g(f"s_cbranch_vccz {ld}")
    if sleep: g(f"s_sleep {sleep}")
    timeout(g, lp)
    g.label(ld)
    if mask: g("s_mov_b64 exec, -1")

def signal(g, vOne, vAddr, sOff, mask, off=0):
    g(f"v_mov_b32 v{vOne}, 1")
    g("s_mov_b32 exec_hi, 0" if mask=="lo32" else f"s_mov_b64 exec, {mask}")
    g(f"buffer_atomic_add v{vOne}, v{vAddr}, {WS}, s{sOff} offen" + (f" offset:{off}" if off else ""))
    g("s_mov_b64 exec, -1")

def wait_cnt(g, vD, vAddr, sOff, need, mask="1", sleep=1, v2=None):
    lp=g.uniq("wc"); ld=g.uniq("wcd")
    g(f"s_mov_b32 s{sTO}, 0")
    g(f"s_mov_b64 exec, {mask}")
    poll=lambda v: (g(f"v_mov_b32 v{v}, 0"), g(f"buffer_atomic_add v{v}, v{vAddr}, {WS}, {sOff} offen sc0"))
    if v2 is not None and OPT.get("pipe",1):
        poll(vD); g(f"s_sleep {OPT.get('pipe_gap',5)}")
        g.label(lp)
        for a,c in ((v2,vD),(vD,v2)):
            poll(a)
            g("s_waitcnt vmcnt(1)")
            g(f"v_cmp_gt_u32 vcc, {need}, v{c}")
            g(f"s_cbranch_vccz {ld}")
    else:
        g.label(lp)
        poll(vD)
        g("s_waitcnt vmcnt(0)")
        g(f"v_cmp_gt_u32 vcc, {need}, v{vD}")
        g(f"s_cbranch_vccz {ld}")
        if sleep: g(f"s_sleep {sleep}")
    timeout(g, lp)
    g.label(ld)
    g("s_mov_b64 exec, -1")

def qkv(g, isv):
    N="qkv"+("v" if isv else "q")
    sH,sTy,sI,sA,sB,sLB,sOut,sFl,sSeg,sP1,sFx,sRot=52,53,54,55,56,57,58,59,60,61,62,64
    sFl1,sHf=63,82
    vOff,vA,vT,vSt,vFa,vPl,vLf=1,2,3,4,5,6,7
    vAd=8
    vF=32
    vC=64
    vPk=80
    g.label(f"L_{N}")
    g(f"s_mul_i32 s{sLB}, s{sW}, 40960")
    g(f"s_mul_i32 s{sFx}, s{sH}, 3"); g(f"s_add_u32 s{sFx}, s{sFx}, s{sTy}")
    g(f"s_mul_i32 s3, s{sFx}, 13108"); g("s_lshr_b32 s3, s3, 16"); g("s_mul_i32 s3, s3, 5"); g(f"s_sub_u32 s{sA}, s{sFx}, s3")
    rot_table(g, sRot, sA, 5)
    g(f"s_lshl_b32 s{sA}, s{sH}, 8")
    import pre
    load_w32(g, 5, 8192, sA, sLB, 4, vA, vT, sRot, 0)
    pre.dbsrd(g)
    g(f"buffer_load_dword v30, off, {pre.DB}, 0 offset:{pre.BA[0]+128} sc1")
    load_w32(g, 5, 8192, sA, sLB, 4, vA, vT, sRot, 1)
    lA=g.uniq("qa")
    g("v_cmp_eq_u32 vcc, 0, v30"); g(f"s_cbranch_vccz {lA}")
    pre.wait_bar(g,*pre.BA,1)
    g.label(lA)
    for B in range(5): g(f"s_lshl_b32 s{sRot+B}, s{sRot+B}, 8")
    vOff2=24
    def vsetup():
        g(f"v_lshrrev_b32 v{vOff}, 4, v0"); g("s_mov_b32 s3, 1280"); g(f"v_mul_lo_u32 v{vOff}, v{vOff}, s3")
        g(f"v_and_b32 v{vT}, 15, v0"); g(f"v_lshl_add_u32 v{vOff}, v{vT}, 4, v{vOff}")
        g(f"v_add_u32 v{vPl}, {4*1280}, v{vOff}")
        g(f"v_mov_b32 v{vOff2}, v{vPl}")
        g(f"v_and_b32 v{vA}, 31, v0"); g(f"v_lshlrev_b32 v{vA}, 8, v{vA}")
        g(f"v_lshrrev_b32 v{vSt}, 5, v0"); g(f"v_xor_b32 v{vSt}, v{vSt}, v{vT}")
        for j in range(8):
            g(f"v_xor_b32 v{vAd+j}, {2*j}, v{vSt}")
            g(f"v_lshl_add_u32 v{vAd+j}, v{vAd+j}, 4, v{vA}")
            g(f"v_add_u32 v{vAd+8+j}, 40960, v{vAd+j}")
        g(f"v_lshrrev_b32 v{vSt}, 5, v0"); g(f"v_lshlrev_b32 v{vSt}, 8, v{vSt}")
        g(f"v_lshl_add_u32 v{vSt}, v{vT}, 4, v{vSt}")
        g(f"v_and_b32 v{vA}, 16, v0"); g(f"v_lshl_add_u32 v{vSt}, v{vA}, {6 if isv else 8}, v{vSt}")
        g(f"s_lshl_b32 s3, s{sW}, {11 if isv else 10}"); g(f"v_add_u32 v{vSt}, s3, v{vSt}")
        g(f"v_mul_u32_u24 v{vFa}, {CXNS}, v0"); g(f"v_mov_b32 v{vLf}, {L_FLAG}")
    vsetup()
    g(f"s_lshl_b32 s75, s{sFx}, 2"); g(f"s_add_u32 s75, s75, s{sW}")
    hblk(g,sOut,sH); g(f"s_add_u32 s{sOut}, s{sOut}, {VO if isv else KQ}")
    g(f"s_cmp_eq_u32 s{sTy}, 0"); g(f"s_cselect_b32 s{sHf}, 8192, 0")
    g(f"s_lshl_b32 s{sFl}, s{sH}, 8"); g(f"s_add_u32 s{sFl}, s{sFl}, {CQKV}")
    g(f"s_lshl_b32 s{sB}, s{sW}, 11")
    g(f"s_mov_b32 s{sI}, 0")
    g(f"s_mov_b32 s{sP1}, 0")
    def dma(layer, sS, defer=False, buf=None):
        buf=layer if buf is None else buf
        g(f"s_mul_i32 s{sA}, s{sS}, 40960"); g(f"s_mul_i32 s3, s{sW}, {8*1280}"); g(f"s_add_u32 s{sA}, s{sA}, s3"); g(f"s_add_u32 s{sA}, s{sA}, {XN+layer*64*40960}")
        L=[f"s_add_u32 m0, s{sB}, {buf*40960+B*8192+1024*e}\ns_add_u32 s3, s{sA}, s{sRot+B}\nbuffer_load_dwordx4 v{vOff2 if e else vOff}, {WS}, s3 offen sc1 lds" for B in range(5) for e in range(2)]
        if defer: return L
        for x in L: g(x)
    def compute(layer, staged, hooks={}, extra=(), buf=None):
        buf=layer if buf is None else buf
        Rd=lambda k: f"ds_read_b128 {q4('v',vF+4*(k%8))}, v{vAd+8*buf+k%8} offset:{(k//8)*8192}"
        def Mf(k):
            x=q4('v',vF+4*(k%8)); w=q4('a',4*k)
            return f"{MF32} v[{vC}:{vC+15}], {x if isv else w}, {w if isv else x}, {'0' if k==0 else f'v[{vC}:{vC+15}]'}"
        gemm_stream(g,5,Rd,Mf,staged,hooks,extra,3)
        blk(g,3,sSeg,sOut,0,sHf)
        if layer: g(f"s_add_u32 s3, s3, {LST}")
        g("s_nop 8")
        P=vPk+8*buf
        for c in range(2):
            for h in range(2):
                a=c+2*h
                g(f"v_cvt_pk_bf16_f32 v{P+4*c+2*h}, v{vC+4*a}, v{vC+4*a+1}")
                g(f"v_cvt_pk_bf16_f32 v{P+4*c+2*h+1}, v{vC+4*a+2}, v{vC+4*a+3}")
            g(f"buffer_store_dwordx4 {q4('v',P+4*c)}, v{vSt}, {WS}, s3 offen offset:{512*c} sc1")
    def pend_flag():
        l=g.uniq("pf")
        g(f"s_cmp_eq_u32 s{sP1}, 0"); g(f"s_cbranch_scc1 {l}")
        g(f"s_lshl_b32 s3, s{sP1}, 2"); g(f"s_add_u32 s3, s3, s{sFl}"); g("s_sub_u32 s3, s3, 4")
        signal(g, vT, vFa, 3, "1")
        g(f"s_mov_b32 s{sP1}, 0")
        g.label(l)
    def sig2():
        g(f"s_lshl_b32 s3, s{sI}, 2"); g(f"s_add_u32 s3, s3, s{sFl1}")
        signal(g, vT, vFa, 3, "1")
    assert AHEAD%2==0
    g(f"s_mov_b32 s{pre.sCh}, s75")
    dma(0, sI)
    g("s_waitcnt vmcnt(0)")
    g.label(f"L_{N}_pre")
    for bf in range(2):
        g("s_barrier")
        g(f"s_mov_b32 s{sSeg}, s{sI}"); g(f"s_add_u32 s{sI}, s{sI}, 1")
        def h_p():
            g(f"s_waitcnt vmcnt(7)"); pend_flag()
        compute(0, False, {20:h_p}, extra=dma(0, sI, True, 1-bf), buf=bf)
        g(f"s_mov_b32 s{sP1}, s{sI}")
        if bf==0:
            l1=g.uniq("f1")
            g(f"s_cmp_lg_u32 s{sI}, 1"); g(f"s_cbranch_scc1 {l1}")
            g("s_waitcnt vmcnt(0)"); pend_flag()
            tl(g,TRACE[0],DBG3+16384,101,2)
            pre.conv_pref(g,0)
            l2=g.uniq("f2"); g(f"s_branch {l2}")
            g.label(l1)
        g("s_waitcnt vmcnt(2)")
        if bf==0: g.label(l2)
    lcv=g.uniq("cv")
    g(f"s_cmp_lg_u32 s{sI}, {OPT.get('conv_at',4)}"); g(f"s_cbranch_scc1 {lcv}")
    g("s_waitcnt vmcnt(0)"); pend_flag()
    pre.qkv_conv(g,0); vsetup()
    g.label(lcv)
    g(f"s_cmp_lt_u32 s{sI}, {AHEAD}"); g(f"s_cbranch_scc1 L_{N}_pre")
    g("s_waitcnt vmcnt(0)"); pend_flag()
    pre.qkv_conv(g,1); vsetup()
    pre.wait_wg(g,*pre.BC1,25)
    near_setup(g,25)
    g(f"s_cmp_lt_u32 s{sFx}, {56 if OPT.get('place',1)==1 else 96}"); g(f"s_cselect_b32 s3, s{sN1}, s{sN0}")
    g(f"s_lshl_b32 s{sFx}, s{sFx}, 8"); spread_s(g,sFx); g(f"s_add_u32 s{sFx}, s{sFx}, s3"); g(f"s_add_u32 s{sFx}, s{sFx}, {CXN}")
    g(f"s_add_u32 s{sFl1}, s{sFl}, s{sN0}"); g(f"s_add_u32 s{sFl1}, s{sFl1}, {CQKV1-CQKV-4*AHEAD}")
    g.label(f"L_{N}_block")
    lw=g.uniq("w"); lw2=g.uniq("w")
    g(f"s_lshl_b32 s{sA}, s{sI}, 2"); g(f"s_add_u32 s{sA}, s{sA}, s{sFx}"); g(f"s_sub_u32 s{sA}, s{sA}, {4*AHEAD}")
    g(f"s_cmp_lg_u32 s{sW}, 0"); g(f"s_cselect_b32 s3, {OOB}, s{sA}")
    g(f"v_mov_b32 v{vPl}, 8"); g("s_mov_b64 exec, 15"); g(f"v_mov_b32 v{vPl}, 0")
    g(f"buffer_atomic_add v{vPl}, v{vFa}, {WS}, s3 offen sc0")
    g("s_mov_b64 exec, -1")
    g("s_waitcnt vmcnt(0)")
    pend_flag()
    g(f"s_cmp_lg_u32 s{sW}, 0"); g(f"s_cbranch_scc1 {lw}")
    g(f"v_cmp_gt_u32 vcc, 8, v{vPl}"); g(f"s_cbranch_vccz {lw}")
    wait_cnt(g, 28, vFa, f"s{sA}", "8", mask="15", v2=29)
    g.label(lw)
    g("s_barrier")
    g.label(f"L_{N}_loop")
    lc=g.uniq("c2")
    g(f"s_cmp_lg_u32 s{sI}, {pre.ROW2//32}"); g(f"s_cbranch_scc1 {lc}")
    pre.wait_wg(g,*pre.BC2,25)
    g.label(lc)
    trace(g,sI,0,vT)
    g(f"s_sub_u32 s{sSeg}, s{sI}, {AHEAD}")
    dma(1, sSeg)
    g(f"s_min_u32 s{sTO}, s{sI}, 63")
    compute(1, True, {0:lambda: trace(g,sI,4,vT)}, extra=dma(0, sTO, True))
    trace(g,sI,1,vT)
    l_no0=g.uniq("n0")
    g(f"s_cmp_ge_u32 s{sI}, 64"); g(f"s_cbranch_scc1 {l_no0}")
    g("s_waitcnt vmcnt(2)")
    g("s_barrier")
    g(f"s_lshl_b32 s{sA}, s{sI}, 2"); g(f"s_add_u32 s{sA}, s{sA}, s{sFx}"); g(f"s_sub_u32 s{sA}, s{sA}, {4*AHEAD-4}")
    g(f"s_cmp_lg_u32 s{sW}, 0"); g(f"s_cselect_b32 s{sA}, {OOB}, s{sA}")
    g(f"v_mov_b32 v{vPl}, 8")
    g(f"s_mov_b32 s{sSeg}, s{sI}")
    def h_poll():
        g("s_mov_b64 exec, 15"); g(f"v_mov_b32 v{vPl}, 0")
        g(f"buffer_atomic_add v{vPl}, v{vFa}, {WS}, s{sA} offen sc0")
        g("s_mov_b64 exec, -1")
    def h_sig():
        g("s_waitcnt vmcnt(0)")
        sig2(); pend_flag()
        trace(g,sI,2,vT)
    compute(0, False, {OPT.get('qkv_sig',18):h_sig, OPT.get('qkv_poll',26):h_poll})
    trace(g,sI,3,vT)
    tflush(g,sI,100)
    g(f"s_add_u32 s{sI}, s{sI}, 1"); g(f"s_mov_b32 s{sP1}, s{sI}")
    lw=g.uniq("w")
    g(f"s_cmp_lg_u32 s{sW}, 0"); g(f"s_cbranch_scc1 {lw}")
    g(f"s_waitcnt vmcnt({2+(2 if TRACE[0] else 0)})")
    g(f"v_cmp_gt_u32 vcc, 8, v{vPl}"); g("s_nop 1"); g(f"v_mov_b32 v{vT}, vcc_lo")
    g(f"ds_write_b32 v{vLf}, v{vT}")
    g("s_waitcnt lgkmcnt(0)")
    g.label(lw)
    g("s_barrier")
    g(f"ds_read_b32 v{vT}, v{vLf}")
    g("s_waitcnt lgkmcnt(0)")
    g(f"v_readfirstlane_b32 s3, v{vT}")
    g("s_cmp_eq_u32 s3, 0"); g(f"s_cbranch_scc1 L_{N}_loop")
    g(f"s_branch L_{N}_block")
    g.label(l_no0)
    g("s_waitcnt vmcnt(0)")
    sig2()
    tflush(g,sI,100)
    g(f"s_add_u32 s{sI}, s{sI}, 1")
    g(f"s_cmp_lt_u32 s{sI}, {64+AHEAD}"); g(f"s_cbranch_scc1 L_{N}_block")
    g("s_endpgm")

def xsum4(g, v, t, op):
    g(f"v_mov_b32 v{t}, v{v}"); g("s_nop 1")
    g(f"v_permlane16_swap_b32 v{v}, v{t}")
    g(f"{op} v{v}, v{v}, v{t}")
    g(f"v_mov_b32 v{t}, v{v}"); g("s_nop 1")
    g(f"v_permlane32_swap_b32 v{v}, v{t}")
    g(f"{op} v{v}, v{v}, v{t}")

def rnd_pairs(g, regs, tmp):
    for i in range(0,len(regs),2):
        a,b=regs[i],regs[i+1]
        g(f"v_cvt_pk_bf16_f32 v{tmp}, v{a}, v{b}")
        g(f"v_lshlrev_b32 v{a}, 16, v{tmp}")
        g(f"v_and_b32 v{b}, 0xffff0000, v{tmp}")

def warm(g):
    N="wm"
    sH,sT,sA,sNeed,sFW,sSeg,sB=52,53,54,55,56,57,58
    vO,vT,vFq,vZ,vC,vN,vK=1,2,3,4,5,6,7
    g.label(f"L_{N}")
    group_local(g,1)
    g(f"s_lshl_b32 s{sH}, s{sX}, 3"); g(f"s_sub_u32 s3, s{sTK}, 30"); g("s_lshl_b32 s3, s3, 2"); g(f"s_add_u32 s{sH}, s{sH}, s3"); g(f"s_add_u32 s{sH}, s{sH}, s{sW}")
    g(f"v_lshlrev_b32 v{vO}, 7, v0")
    g(f"s_lshl_b32 s3, s{sH}, 8"); g(f"s_add_u32 s3, s3, {CQKV}")
    g(f"v_mov_b32 v{vFq}, s3")
    g(f"s_lshl_b32 s{sFW}, s{sH}, 7"); g(f"s_add_u32 s{sFW}, s{sFW}, {FLW}")
    g(f"s_mov_b32 s{sT}, 0"); g(f"v_mov_b32 v{vZ}, 0"); g(f"v_mov_b32 v{vN}, 0")
    WQ=OPT.get("warmq",0)
    NT=3 if WQ else 2
    def touch(lam, tys=((1,2,0) if WQ else (1,2)), back=0):
        g(f"s_sub_u32 s{sSeg}, s{sT}, {LAG*lam+back}")
        hblk(g,3,sH); g(f"s_add_u32 s3, s3, {KQ+lam*LST}"); blk(g,sB,sSeg,3,0)
        g(f"s_cmp_lt_u32 s{sSeg}, 64"); g(f"s_cselect_b32 s{sB}, s{sB}, {OOB}")
        for ty in tys:
            g([f"s_xor_b32 s3, s{sB}, 8192", f"s_mov_b32 s3, s{sB}", f"s_add_u32 s3, s{sB}, {VO-KQ}"][ty])
            g(f"buffer_load_dword v{8+3*lam+ty}, v{vO}, {WS}, s3 offen sc1")
    def touchq():
        pass
    def flag(lam):
        g(f"s_sub_i32 s{sNeed}, s{sT}, {LAG*lam-1}"); g(f"s_max_i32 s{sNeed}, s{sNeed}, 0")
        g(f"s_add_u32 s3, s{sFW}, {4*lam}")
        lflag_store(g, vT, 3, sNeed)
    g.label(f"L_{N}_loop")
    ln=g.uniq("wn")
    g(f"s_cmp_lg_u32 s{sT}, {LAG}"); g(f"s_cbranch_scc1 {ln}")
    near_setup(g,20)
    g(f"s_lshl_b32 s3, s{sH}, 8"); g(f"s_add_u32 s3, s3, s{sN0}"); g(f"s_add_u32 s3, s3, {CQKV1-4*LAG}"); g(f"v_writelane_b32 v{vFq}, s3, 1")
    g.label(ln)
    g(f"s_sub_i32 s{sNeed}, s{sT}, {OPT.get('warm_ahead',2)}"); g(f"s_max_i32 s{sNeed}, s{sNeed}, 0"); g(f"s_min_u32 s{sNeed}, s{sNeed}, 64")
    g(f"s_add_u32 s{sA}, s{sFW}, 8")
    poll_ge(g, vT, vZ, f"s{sA}", f"s{sNeed}", mask="1", sleep=2)
    if OPT.get("warm_dly"): g(f"s_sleep {OPT['warm_dly']}")
    g(f"s_cmp_lt_u32 s{sT}, 64"); g("s_cselect_b32 s3, 12, 0"); g(f"v_writelane_b32 v{vN}, s3, 0")
    g(f"s_cmp_ge_u32 s{sT}, {LAG}"); g("s_cselect_b32 s3, 12, 0"); g(f"v_writelane_b32 v{vN}, s3, 1")
    g(f"s_lshl_b32 s{sA}, s{sT}, 2")
    lp=g.uniq("w0"); ld=g.uniq("w0d"); ll=g.uniq("wl"); le=g.uniq("we")
    g(f"s_mov_b32 s{sTO}, 0")
    g.label(lp)
    g(f"v_mov_b32 v{vC}, 0"); g("s_mov_b64 exec, 3")
    g(f"buffer_atomic_add v{vC}, v{vFq}, {WS}, s{sA} offen sc0")
    g("s_mov_b64 exec, -1"); g("s_waitcnt vmcnt(0)")
    g(f"v_cmp_gt_u32 vcc, v{vN}, v{vC}")
    g("s_bitcmp0_b32 vcc_lo, 0"); g(f"s_cbranch_scc1 {ld}")
    g("s_sleep 2")
    timeout(g, lp)
    g.label(ld)
    trace(g,sT,0,vT)
    g(f"s_cbranch_vccnz {ll}")
    trace(g,sT,2,vT)
    touch(1); touch(0)
    g(f"s_waitcnt vmcnt({NT})"); flag(1)
    g("s_waitcnt vmcnt(1)"); flag(0)
    touchq()
    g(f"s_branch {le}")
    g.label(ll)
    touch(0); touchq()
    g(f"v_mov_b32 v{vC}, 0"); g("s_mov_b64 exec, 3")
    g(f"buffer_atomic_add v{vC}, v{vFq}, {WS}, s{sA} offen sc0")
    g("s_mov_b64 exec, -1")
    g("s_waitcnt vmcnt(1)"); flag(0)
    g("s_waitcnt vmcnt(0)")
    g(f"v_cmp_gt_u32 vcc, v{vN}, v{vC}")
    l2=g.uniq("w2")
    g(f"s_cbranch_vccz {l2}")
    wait_cnt(g, vC, vFq, f"s{sA}", f"v{vN}", mask="3", sleep=OPT.get("warm_sleep",1))
    g.label(l2)
    trace(g,sT,2,vT)
    touch(1)
    g("s_waitcnt vmcnt(0)"); flag(1)
    g.label(le)
    trace(g,sT,1,vT); trace(g,sT,3,vT)
    tflush(g,sT,20)
    g(f"s_add_u32 s{sT}, s{sT}, 1")
    g(f"s_cmp_lt_u32 s{sT}, {NSTEP}"); g(f"s_cbranch_scc1 L_{N}_loop")
    g("s_endpgm")

def attn(g):
    N="att"
    sH,sLam,sS,sA,sB,sIn,sEXb,sOut,sFO,sFW,sSc,sL2e,sNeed,sEX=52,53,54,55,56,57,58,59,60,61,62,63,64,65
    vL16,vL16b,vT,vT2,vZ,vL16c,vSt=1,2,3,4,5,6,7
    vBm,vBd=8,12
    vKM,vVM,vS,vO=32,48,64,88
    vCan,vSig,vWf=30,31,29
    vPm,vP=[152,160],[168,172]
    vM1,vL1,vMx,vTx,vF=[16,17],[18,19],[20,21],[22,23],[24,26]
    vOp=176
    aQ,aK,aV=0,32,64
    g.label(f"L_{N}")
    group_local(g,1)
    g(f"s_lshl_b32 s{sH}, s{sX}, 3"); g(f"s_sub_u32 s3, s{sTK}, 16"); g("s_lshl_b32 s3, s3, 1"); g(f"s_add_u32 s{sH}, s{sH}, s3")
    g(f"s_lshr_b32 s3, s{sW}, 1"); g(f"s_add_u32 s{sH}, s{sH}, s3")
    g(f"s_and_b32 s{sLam}, s{sW}, 1")
    g(f"v_lshlrev_b32 v{vL16}, 4, v0"); g(f"v_add_u32 v{vL16b}, 4096, v{vL16}"); g(f"v_add_u32 v{vL16c}, 8192, v{vL16}"); g(f"v_mov_b32 v{vZ}, 0")
    g(f"s_lshl_b32 s{sFW}, s{sH}, 7"); g(f"s_lshl_b32 s3, s{sLam}, 2"); g(f"s_add_u32 s{sFW}, s{sFW}, s3"); g(f"s_add_u32 s{sFW}, s{sFW}, {FLW}")
    g(f"s_lshl_b32 s{sIn}, s{sLam}, 11"); g(f"s_add_u32 s{sIn}, s{sIn}, s{sH}"); hblk(g,sIn,sIn); g(f"s_add_u32 s{sIn}, s{sIn}, {KQ}")
    g(f"s_mul_i32 s{sEXb}, s{sH}, 12288"); g(f"s_add_u32 s{sEXb}, s{sEXb}, {EX}")
    g(f"s_add_u32 s{sOut}, s{sIn}, {VO-KQ}")
    near_setup(g,vBm)
    g(f"s_lshl_b32 s{sFO}, s{sLam}, 8"); g(f"s_add_u32 s{sFO}, s{sFO}, s{sN0 if OPT.get('place',1)==2 else sN1}"); g(f"s_add_u32 s{sFO}, s{sFO}, {CO}")
    g(f"s_lshr_b32 s3, s{sH}, 2"); g(f"s_mul_i32 s3, s3, {5*512}"); g(f"v_lshl_add_u32 v{vSig}, v0, 9, s3"); spread_v(g,vSig,vT)
    g(f"v_lshrrev_b32 v{vT}, 4, v0"); g(f"v_lshlrev_b32 v{vSt}, 9, v{vT}"); g(f"v_and_b32 v{vT2}, 15, v0"); g(f"v_lshl_add_u32 v{vSt}, v{vT2}, 4, v{vSt}")
    g(f"v_mov_b32 v{vO}, 0xff61b1e6")
    g(f"v_lshlrev_b32 v{vT}, 2, v{vT}")
    for b in range(4):
        g(f"v_add_u32 v{vO+1}, {b}, v{vT}")
        g(f"v_cmp_gt_u32 vcc, v{vO+1}, v{vT2}"); g("s_nop 1")
        g(f"v_cndmask_b32 v{vBd+b}, 0, v{vO}, vcc")
    g(f"v_lshrrev_b32 v{vT}, 5, v0"); g(f"v_cmp_ne_u32 vcc, s{sLam}, v{vT}"); g("s_nop 1")
    for b in range(4): g(f"v_cndmask_b32 v{vBm+b}, 0, v{vO}, vcc")
    for i in range(24): g(f"v_mov_b32 v{152+i}, 0")
    g(f"s_mov_b32 s{sSc}, {hex(f32bits(128**-0.5))}"); g(f"s_mov_b32 s{sL2e}, {hex(f32bits(math.log2(math.e)))}")
    g(f"s_mov_b32 s{sS}, 0")
    g(f"v_lshlrev_b32 v{vCan}, 10, v0"); g(f"v_add_u32 v{vCan}, 4096, v{vCan}")
    g(f"s_mul_i32 s{sNeed}, s{sLam}, {LAG}"); g(f"s_add_u32 s{sA}, s{sFW}, 4")
    poll_ge(g, vT, vZ, f"s{sA}", f"s{sNeed}", mask="1", sleep=8)
    def fetch():
        blk(g,sB,sS,sIn,0)
        g(f"s_cmp_lt_u32 s{sS}, 64"); g(f"s_cselect_b32 s{sB}, s{sB}, {OOB}")
        for ty in (0,1,2):
            g([f"s_xor_b32 s3, s{sB}, 8192", f"s_mov_b32 s3, s{sB}", f"s_add_u32 s3, s{sB}, {VO-KQ}"][ty])
            for i in range(8):
                g(f"buffer_load_dwordx4 {q4('a',32*ty+4*i)}, v{vL16 if i<4 else vL16b}, {WS}, s3 offen offset:{1024*(i%4)} sc1{' nt' if ty<OPT.get('att_nt',0) else ''}")
    poll_ge(g, vT, vZ, f"s{sFW}", "1", mask="1", sleep=4)
    fetch()
    g.label(f"L_{N}_loop")
    trace(g,sS,0,vT2)
    g(f"s_mul_i32 s{sNeed}, s{sLam}, {LAG}"); g(f"s_add_u32 s{sNeed}, s{sNeed}, s{sS}")
    g(f"s_and_b32 s3, s{sNeed}, 3"); g(f"s_mul_i32 s{sEX}, s3, {32*12288}"); g(f"s_add_u32 s{sEX}, s{sEX}, s{sEXb}")
    g(f"s_add_u32 s{sNeed}, s{sNeed}, 1")
    blk(g,sA,sS,sOut,1)
    g("s_waitcnt vmcnt(8)")
    S0,S1=vS,vS+12
    for j in range(4): g(f"{MF} {q4('v',S0+4)}, {q4('a',aK+4*j)}, {q4('a',aQ+4*j)}, {q4('v',vBd) if j==0 else q4('v',S0+4)}")
    for j in range(4): g(f"{MF} {q4('v',S1+4)}, {q4('a',aK+4*j)}, {q4('a',aQ+16+4*j)}, {'0' if j==0 else q4('v',S1+4)}")
    for j in range(4): g(f"{MF} {q4('v',S1+8)}, {q4('a',aK+16+4*j)}, {q4('a',aQ+16+4*j)}, {q4('v',vBd) if j==0 else q4('v',S1+8)}")
    g("s_nop 7")
    def scale(R):
        rnd_pairs(g,R,vT)
        for r in R: g(f"v_mul_f32 v{r}, s{sSc}, v{r}")
        rnd_pairs(g,R,vT)
    scale([S0+4+i for i in range(4)]+[S1+4+i for i in range(8)])
    def x2(a,t,op):
        L=[]
        for sw in ("v_permlane16_swap_b32","v_permlane32_swap_b32"):
            L+=[f"v_mov_b32 v{t[0]}, v{a[0]}",f"v_mov_b32 v{t[1]}, v{a[1]}","s_nop 0",f"{sw} v{a[0]}, v{t[0]}",f"{sw} v{a[1]}, v{t[1]}",
                f"{op} v{a[0]}, v{a[0]}, v{t[0]}",f"{op} v{a[1]}, v{a[1]}, v{t[1]}"]
        return L
    g(f"v_max3_f32 v{vM1[0]}, v{S0+4}, v{S0+5}, v{S0+6}"); g(f"v_max_f32 v{vM1[0]}, v{vM1[0]}, v{S0+7}")
    g(f"v_max3_f32 v{vM1[1]}, v{S1+4}, v{S1+5}, v{S1+6}"); g(f"v_max3_f32 v{vM1[1]}, v{vM1[1]}, v{S1+7}, v{S1+8}")
    g(f"v_max3_f32 v{vM1[1]}, v{vM1[1]}, v{S1+9}, v{S1+10}"); g(f"v_max_f32 v{vM1[1]}, v{vM1[1]}, v{S1+11}")
    for x in x2(vM1,vTx,"v_max_f32"): g(x)
    SG=[[S0+4+i for i in range(4)],[S1+4+i for i in range(8)]]
    for u in range(2):
        g(f"v_mul_f32 v{vTx[u]}, s{sL2e}, v{vM1[u]}")
        for r in SG[u]: g(f"v_fma_f32 v{r}, v{r}, s{sL2e}, -v{vTx[u]}")
    for u in range(2):
        for r in SG[u]: g(f"v_exp_f32 v{r}, v{r}")
    for u in range(2):
        g(f"v_add_f32 v{vL1[u]}, v{SG[u][0]}, v{SG[u][1]}")
        for r in SG[u][2:]: g(f"v_add_f32 v{vL1[u]}, v{vL1[u]}, v{r}")
    trace(g,sS,1,vT2)
    def ld4(base,va): return [f"buffer_load_dwordx4 {q4('v',base+4*i)}, v{va}, {WS}, s{sEX} offen offset:{1024*i} sc1" for i in range(4)]
    def chk(base):
        R=[base+i for i in range(0,16,2)]
        g(f"v_max_u32 v{vT}, v{R[0]}, v{R[1]}")
        for i in range(2,8,2): g(f"v_max3_u32 v{vT}, v{vT}, v{R[i]}, v{R[i+1]}")
        g(f"v_cmp_eq_u32 vcc, -1, v{vT}")
    lp=g.uniq("pc"); ld=g.uniq("pcd")
    g(f"s_mov_b32 s{sTO}, 0")
    g("s_mov_b64 exec, 15")
    g.label(lp)
    g(f"buffer_load_dword v{vT}, v{vCan}, {WS}, s{sEX} offen sc1")
    g("s_waitcnt vmcnt(0)")
    g(f"v_cmp_eq_u32 vcc, -1, v{vT}")
    g(f"s_cbranch_vccz {ld}")
    g(f"s_sleep {OPT.get('att_sleep',2)}")
    timeout(g, lp)
    g.label(ld)
    g("s_mov_b64 exec, -1")
    lp=g.uniq("pk"); ld=g.uniq("pkd")
    g.label(lp)
    for x in ld4(vKM,vL16b): g(x)
    g("s_waitcnt vmcnt(0)")
    chk(vKM)
    g(f"s_cbranch_vccz {ld}")
    timeout(g, lp)
    g.label(ld)
    trace(g,sS,2,vT2)
    for u in range(2):
        for j in range(4): g(f"{MF} {q4('v',vS+12*u)}, {q4('v',vKM+4*j)}, {q4('a',aQ+16*u+4*j)}, {q4('v',vBm) if j==0 else q4('v',vS+12*u)}")
    g("s_nop 3")
    if OPT.get("mim",1): scale([S0+i for i in range(4)]+[S1+i for i in range(4)])
    else:
        for r in [S0+i for i in range(4)]+[S1+i for i in range(4)]: g(f"v_mul_f32 v{r}, s{sSc}, v{r}")
    for x in ld4(vVM,vL16c): g(x)
    g(f"buffer_load_dword v{vWf}, v{vZ}, {WS}, s{sFW} offen sc1")
    for u in range(2):
        Sx=vS+12*u
        g(f"v_max3_f32 v{vMx[u]}, v{Sx}, v{Sx+1}, v{Sx+2}"); g(f"v_max3_f32 v{vMx[u]}, v{vMx[u]}, v{Sx+3}, v{vM1[u]}")
    for x in x2(vMx,vTx,"v_max_f32"): g(x)
    for u in range(2):
        Sx=vS+12*u
        g(f"v_mul_f32 v{vMx[u]}, s{sL2e}, v{vMx[u]}")
        g(f"v_fma_f32 v{vF[u]}, v{vM1[u]}, s{sL2e}, -v{vMx[u]}")
        for i in range(4): g(f"v_fma_f32 v{Sx+i}, v{Sx+i}, s{sL2e}, -v{vMx[u]}")
    for u in range(2):
        g(f"v_exp_f32 v{vF[u]}, v{vF[u]}")
        for i in range(4): g(f"v_exp_f32 v{vS+12*u+i}, v{vS+12*u+i}")
    for u in range(2):
        Sx=vS+12*u
        g(f"v_fma_f32 v{vL1[u]}, v{vL1[u]}, v{vF[u]}, v{Sx}")
        for i in range(1,4): g(f"v_add_f32 v{vL1[u]}, v{vL1[u]}, v{Sx+i}")
    for x in x2(vL1,vTx,"v_add_f32"): g(x)
    for u in range(2): g(f"v_rcp_f32 v{vL1[u]}, v{vL1[u]}")
    for u in range(2): g(f"v_mul_f32 v{vF[u]}, v{vF[u]}, v{vL1[u]}")
    def norm(u):
        Sx=vS+12*u; L=[]
        for i in range(0,len(SG[u]),2):
            r=SG[u][i]
            L+=[f"v_pk_mul_f32 v[{r}:{r+1}], v[{r}:{r+1}], v[{vF[u]}:{vF[u]+1}] op_sel_hi:[1,0]", f"v_cvt_pk_bf16_f32 v{vP[u]+i//2}, v{r}, v{r+1}"]
        for i in range(4): L.append(f"v_mul_f32 v{Sx+i}, v{Sx+i}, v{vL1[u]}")
        L+=[f"v_cvt_pk_bf16_f32 v{vPm[u]+2}, v{Sx}, v{Sx+1}", f"v_cvt_pk_bf16_f32 v{vPm[u]+3}, v{Sx+2}, v{Sx+3}"]
        return L
    pvs=lambda u: [f"{MF} {q4('v',vO+32*u+4*i)}, {q4('a',aV+4*i)}, {q4('v',vP[u])}, 0" for i in range(8)]
    pvm=lambda u: [f"{MF} {q4('v',vO+32*u+4*i)}, {q4('v',vVM+4*(i//2))}, {q4('v',vPm[u]+2) if i%2==0 else q4('v',vPm[u])}, {q4('v',vO+32*u+4*i)}" for i in range(8)]
    def outs(u):
        L=[]
        for j in range(4):
            L+=[f"v_cvt_pk_bf16_f32 v{vOp+16*u+i}, v{vO+32*u+2*i}, v{vO+32*u+2*i+1}" for i in range(4*j,4*j+4)]
            L+=[f"s_add_u32 s3, s{sA}, {2048*j}\nbuffer_store_dwordx4 {q4('v',vOp+16*u+4*j)}, v{vSt}, {WS}, s3 offen offset:{256*u} sc1"]
        return L
    for x in norm(0): g(x)
    interleave(g, pvs(0), norm(1), per=2)
    for x in pvs(1): g(x)
    lp=g.uniq("pv"); ld=g.uniq("pvd")
    g("s_waitcnt vmcnt(0)")
    g.label(lp)
    chk(vVM)
    g(f"s_cbranch_vccz {ld}")
    for x in ld4(vVM,vL16c): g(x)
    g("s_waitcnt vmcnt(0)")
    timeout(g, lp)
    g.label(ld)
    for x in pvm(0): g(x)
    interleave(g, pvm(1), outs(0), per=2, start=1)
    for x in outs(1): g(x)
    g(f"s_add_u32 s3, s{sFW}, 8")
    lflag_store(g, vT, 3, sNeed)
    trace(g,sS,3,vT2)
    g(f"s_add_u32 s{sS}, s{sS}, 1")
    g(f"s_add_u32 s{sNeed}, s{sS}, 1"); g(f"s_cmp_lt_u32 s{sS}, 64"); g(f"s_cselect_b32 s{sNeed}, s{sNeed}, 0")
    g("s_waitcnt vmcnt(0)")
    signal(g, vT, vSig, sFO, "31")
    trace(g,sS,4,vT2)
    g(f"v_cmp_gt_u32 vcc, s{sNeed}, v{vWf}")
    lj=g.uniq("aj")
    g(f"s_cbranch_vccz {lj}")
    poll_ge(g, vT, vZ, f"s{sFW}", f"s{sNeed}", mask="1", sleep=4)
    g.label(lj)
    fetch()
    if TRACE[0]:
        g(f"s_sub_u32 s97, s{sS}, 1"); tflush(g,97,216)
    g(f"s_add_u32 s{sFO}, s{sFO}, 4")
    g(f"s_cmp_lt_u32 s{sS}, 64"); g(f"s_cbranch_scc1 L_{N}_loop")
    g("s_endpgm")

def wo_weights(g, phase):
    sG,sCC,sA,sLB,sRot=52,53,55,57,64
    if phase==0:
        srd(g, 8, 26, 4096*1280)
        g(f"s_mul_i32 s{sLB}, s{sW}, 40960")
        g(f"s_and_b32 s{sA}, s{sCC}, 3")
        rot_table(g, sRot, sA, 4)
        g(f"s_mul_i32 s{sA}, s{sG}, {512*1280}"); g(f"s_lshl_b32 s3, s{sCC}, 8"); g(f"s_add_u32 s{sA}, s{sA}, s3")
    load_w32(g, 4, 1280, sA, sLB, 4, 2, 3, sRot, phase)

def wo(g):
    N="wo"
    WL=LAG+1
    sG,sCC,sT,sA,sB,sLB,sOut,sSeg,sP1,sRot=52,53,54,55,56,57,58,60,61,64
    vOff,vA,vT,vSt,vFa,vNeed,vL16,vSig,vPl,vLf=1,2,3,4,5,6,7,8,9,10
    vF=32; vC=64
    g.label(f"L_{N}")
    for B in range(4): hblk(g,sRot+B,sRot+B); g(f"s_xor_b32 s{sRot+B}, s{sRot+B}, 8192")
    g(f"v_lshlrev_b32 v{vL16}, 4, v0")
    g(f"v_lshrrev_b32 v{vSt}, 5, v0"); g(f"s_mov_b32 s3, {4*2560}"); g(f"v_mul_lo_u32 v{vSt}, v{vSt}, s3")
    g(f"v_and_b32 v{vT}, 31, v0"); g(f"v_lshl_add_u32 v{vSt}, v{vT}, 2, v{vSt}")
    g(f"s_lshl_b32 s3, s{sCC}, 9"); g(f"s_lshl_b32 s{sA}, s{sW}, 7"); g(f"s_add_u32 s3, s3, s{sA}"); g(f"v_add_u32 v{vSt}, s3, v{vSt}")
    g(f"s_mul_i32 s{sOut}, s{sG}, 81920"); g(f"s_add_u32 s{sOut}, s{sOut}, {PB}")
    near_setup(g,12)
    g(f"v_lshlrev_b32 v{vSig}, 9, v0"); spread_v(g,vSig,vT); g(f"v_add_u32 v{vSig}, s{sN0 if OPT.get('place',1)==0 else sN1}, v{vSig}")
    g(f"s_mul_i32 s3, s{sG}, 5"); g(f"s_add_u32 s3, s3, s{sCC}"); g(f"s_and_b32 s{sA}, s3, 3"); g(f"s_mul_i32 s{sA}, s{sA}, {CPBS}"); g(f"v_add_u32 v{vSig}, s{sA}, v{vSig}")
    g("s_lshl_b32 s3, s3, 9"); spread_s(g,3); g(f"s_add_u32 s3, s3, s{sN0 if OPT.get('place',1)==2 else sN1}"); g(f"s_add_u32 s3, s3, {CO}")
    g(f"v_mul_u32_u24 v{vFa}, {256-4*WL}, v0"); g(f"v_add_u32 v{vFa}, s3, v{vFa}")
    g(f"v_mov_b32 v{vNeed}, 0"); g(f"v_mov_b32 v{vLf}, {L_FLAG}")
    g(f"s_lshl_b32 s{sB}, s{sW}, 11")
    g(f"s_mov_b32 s{sT}, 0"); g(f"s_mov_b32 s{sP1}, -1")
    def dma(layer, sS, defer=False):
        g(f"s_lshl_b32 s3, s{sG}, 16"); g(f"s_add_u32 s3, s3, s{sB}"); g(f"s_add_u32 s3, s3, {VO+layer*LST}"); blk(g,sA,sS,3,0)
        g(f"s_cmp_lt_u32 s{sS}, 64"); g(f"s_cselect_b32 s{sA}, s{sA}, {OOB}")
        L=[f"s_add_u32 m0, s{sB}, {layer*32768+B*8192}\ns_add_u32 s3, s{sA}, s{sRot+B}\nbuffer_load_dwordx4 v{vL16}, {WS}, s3 offen offset:{1024*e} sc1 lds" for B in range(4) for e in range(2)]
        if defer: return L
        for x in L: g(x)
    def compute(layer, staged, hooks={}, extra=()):
        C=vC+16*layer
        Rd=lambda k: f"ds_read_b128 {q4('v',vF+4*(k%8))}, v{vL16} offset:{layer*32768+k*1024}"
        Mf=lambda k: f"{MF32} v[{C}:{C+15}], {q4('v',vF+4*(k%8))}, {q4('a',4*k)}, {'0' if k==0 else f'v[{C}:{C+15}]'}"
        gemm_stream(g,4,Rd,Mf,staged,hooks,extra,3)
        g(f"s_mul_i32 s{sA}, s{sSeg}, {8*81920}"); g(f"s_add_u32 s{sA}, s{sA}, s{sOut}")
        if layer: g(f"s_add_u32 s{sA}, s{sA}, {64*8*81920}")
        g(f"s_cmp_lt_u32 s{sSeg}, 64"); g(f"s_cselect_b32 s{sA}, s{sA}, {OOB}")
        g("s_nop 7")
        for a in range(4):
            for b in range(4):
                g(f"s_add_u32 s3, s{sA}, {(8*a+b)*2560}")
                g(f"buffer_store_dword v{C+4*a+b}, v{vSt}, {WS}, s3 offen sc1")
    def sig(layer, sS):
        l=g.uniq("sg")
        g(f"s_cmp_lg_u32 s{sW}, 1"); g(f"s_cbranch_scc1 {l}")
        g(f"s_cmp_ge_u32 s{sS}, 64"); g(f"s_cbranch_scc1 {l}")
        g(f"s_lshl_b32 s3, s{sS}, 2"); g(f"s_add_u32 s3, s3, {CPB+256*layer}")
        signal(g, vT, vSig, 3, "lo32")
        g.label(l)
    def need():
        g(f"s_cmp_lt_u32 s{sT}, 64"); g("s_cselect_b32 s3, 4, 0"); g(f"v_writelane_b32 v{vNeed}, s3, 0")
        g(f"s_cmp_ge_u32 s{sT}, {WL}"); g("s_cselect_b32 s3, 4, 0"); g(f"v_writelane_b32 v{vNeed}, s3, 1")
    g.label(f"L_{N}_loop")
    need()
    g(f"s_lshl_b32 s{sA}, s{sT}, 2")
    g(f"s_cmp_lg_u32 s{sW}, 0"); g(f"s_cselect_b32 s3, {OOB}, s{sA}")
    g(f"v_mov_b32 v{vPl}, 0")
    g("s_mov_b64 exec, 3")
    g(f"buffer_atomic_add v{vPl}, v{vFa}, {WS}, s3 offen sc0")
    g("s_mov_b64 exec, -1")
    g("s_waitcnt vmcnt(1)"); g("s_barrier")
    sig(1,sP1)
    g(f"s_cmp_ge_u32 s{sT}, {64+WL}"); g("s_cbranch_scc1 L_bail")
    lw=g.uniq("w")
    g(f"s_cmp_lg_u32 s{sW}, 0"); g(f"s_cbranch_scc1 {lw}")
    g("s_waitcnt vmcnt(0)")
    g(f"v_cmp_gt_u32 vcc, v{vNeed}, v{vPl}"); g(f"s_cbranch_vccz {lw}")
    wait_cnt(g, 12, vFa, f"s{sA}", f"v{vNeed}", mask="3", sleep=0, v2=13)
    g.label(lw)
    g("s_barrier")
    trace(g,sT,0,vT)
    g(f"s_sub_u32 s{sP1}, s{sT}, {WL}")
    lt=g.uniq("tail"); le=g.uniq("e")
    g(f"s_cmp_ge_u32 s{sT}, 64"); g(f"s_cbranch_scc1 {lt}")
    dma(0,sT)
    g(f"s_mov_b32 s{sSeg}, s{sT}")
    compute(0,True,{0:lambda: trace(g,sT,4,vT),31:lambda: trace(g,sT,5,vT)},extra=dma(1,sP1,True))
    trace(g,sT,3,vT)
    g("s_waitcnt vmcnt(16)"); g("s_barrier")
    g(f"s_mov_b32 s{sSeg}, s{sP1}")
    def h_sig():
        g("s_waitcnt vmcnt(0)"); g("s_barrier")
        sig(0,sT)
        trace(g,sT,1,vT)
    compute(1,False,{OPT.get("wo_sig",16):h_sig})
    g(f"s_branch {le}")
    g.label(lt)
    dma(1,sP1)
    g(f"s_mov_b32 s{sSeg}, s{sP1}")
    compute(1,True)
    g.label(le)
    trace(g,sT,2,vT)
    tflush(g,sT,100)
    g(f"s_add_u32 s{sT}, s{sT}, 1")
    g(f"s_branch L_{N}_loop")

def wsum(g, v, t):
    for d in ("quad_perm:[1,0,3,2]","quad_perm:[2,3,0,1]","row_half_mirror","row_mirror"):
        g("s_nop 1")
        g(f"v_add_f32_dpp v{v}, v{v}, v{v} {d} row_mask:0xf bank_mask:0xf")
    xsum4(g,v,t,"v_add_f32")

def rnd1(g, v):
    g(f"v_cvt_pk_bf16_f32 v{v}, v{v}, v{v}")
    g(f"v_and_b32 v{v}, 0xffff0000, v{v}")

def layernorm(g, X, Y, t0,t1,t2, sInv, sEps, packed=None, mim=True):
    assert t1==t0+1 and t0%2==0
    PP=lambda r: f"v[{r}:{r+1}]"
    g(f"v_readfirstlane_b32 s3, v{X}")
    g("s_nop 1")
    for i in range(8): g(f"v_subrev_f32 v{Y+i}, s3, v{X+i}")
    for i in range(8,12): g(f"v_mov_b32 v{Y+i}, 0")
    g("s_mov_b32 exec_hi, 0")
    for i in range(8,12): g(f"v_subrev_f32 v{Y+i}, s3, v{X+i}")
    g("s_mov_b32 exec_hi, -1")
    g(f"v_pk_mul_f32 {PP(t0)}, {PP(Y)}, {PP(Y)}")
    for i in range(2,12,2): g(f"v_pk_fma_f32 {PP(t0)}, {PP(Y+i)}, {PP(Y+i)}, {PP(t0)}")
    for i in range(2,12,2): g(f"v_pk_add_f32 {PP(Y)}, {PP(Y)}, {PP(Y+i)}")
    g(f"v_add_f32 v{t1}, v{t0}, v{t1}"); g(f"v_add_f32 v{t0}, v{Y}, v{Y+1}")
    for d in ("quad_perm:[1,0,3,2]","quad_perm:[2,3,0,1]","row_half_mirror","row_mirror"):
        g("s_nop 0")
        g(f"v_add_f32_dpp v{t1}, v{t1}, v{t1} {d} row_mask:0xf bank_mask:0xf")
        g(f"v_add_f32_dpp v{t0}, v{t0}, v{t0} {d} row_mask:0xf bank_mask:0xf")
    for sw in ("v_permlane16_swap_b32","v_permlane32_swap_b32"):
        g(f"v_mov_b32 v{Y+1}, v{t1}"); g(f"v_mov_b32 v{Y}, v{t0}"); g("s_nop 0")
        g(f"{sw} v{t1}, v{Y+1}"); g(f"{sw} v{t0}, v{Y}")
        g(f"v_pk_add_f32 {PP(t0)}, {PP(t0)}, {PP(Y)}")
    g(f"v_mul_f32 v{t0}, s{sInv}, v{t0}"); g(f"v_mul_f32 v{t1}, s{sInv}, v{t1}")
    g(f"v_fma_f32 v{t1}, -v{t0}, v{t0}, v{t1}"); g(f"v_max_f32 v{t1}, 0, v{t1}")
    g(f"v_add_f32 v{t0}, s3, v{t0}")
    g(f"v_cvt_pk_bf16_f32 v{t2}, v{t0}, v{t1}"); g(f"v_lshlrev_b32 v{t0}, 16, v{t2}"); g(f"v_and_b32 v{t1}, 0xffff0000, v{t2}")
    g(f"v_add_f32 v{t1}, s{sEps}, v{t1}"); rnd1(g,t1)
    g(f"v_sqrt_f32 v{t1}, v{t1}")
    for i in range(0,12,2): g(f"v_pk_add_f32 {PP(Y+i)}, {PP(X+i)}, {PP(t0)} op_sel_hi:[1,0] neg_lo:[0,1] neg_hi:[0,1]")
    rnd1(g,t1)
    g(f"v_rcp_f32 v{t1}, v{t1}")
    if mim: rnd_pairs(g,[Y+i for i in range(12)],t2)
    else: g("s_nop 0")
    for i in range(0,12,2): g(f"v_pk_mul_f32 {PP(Y+i)}, {PP(Y+i)}, {PP(t0)} op_sel:[0,1] op_sel_hi:[1,1]")
    if packed is not None: pack6(g,packed,Y)
    elif mim: rnd_pairs(g,[Y+i for i in range(12)],t2)

def unpack6(g, D, Sx):
    for i in range(6):
        g(f"v_lshlrev_b32 v{D+2*i}, 16, v{Sx+i}")
        g(f"v_and_b32 v{D+2*i+1}, 0xffff0000, v{Sx+i}")
def pack6(g, D, Sx):
    for i in range(6): g(f"v_cvt_pk_bf16_f32 v{D+i}, v{Sx+2*i}, v{Sx+2*i+1}")

def xn_addr(g, vX, vT, rowexpr_s):
    g(f"v_lshrrev_b32 v{vX}, 3, v0"); g(f"v_lshlrev_b32 v{vX}, 2, v{vX}")
    g(f"v_and_b32 v{vT}, 3, v0"); g(f"v_add_u32 v{vX}, v{vX}, v{vT}")
    g(f"v_xor_b32 v{vX}, s{rowexpr_s}, v{vX}")
    g(f"v_lshlrev_b32 v{vX}, 4, v{vX}")
    g(f"v_and_b32 v{vT}, 4, v0"); g(f"v_lshl_add_u32 v{vX}, v{vT}, 1, v{vX}")

def t4(g):
    N="t4"
    sR,sLam,sS,sA,sB,sInv,sEps,sNeed,sRow=52,53,54,55,56,57,58,59,60
    vL16,vL8,vT,vXa,vFa,vL16c,vL8c,vXc=1,2,3,4,5,6,7,8
    t0,t1,t2=10,11,9
    vX,vY,vN,vA,vPk,vFl=12,24,36,48,60,68
    vP=80
    vYa,vPg=72,73
    import pre
    g.label(f"L_{N}")
    g(f"s_lshr_b32 s{sLam}, s{sW}, 1")
    g(f"s_and_b32 s{sS}, s{sW}, 1")
    g(f"v_lshlrev_b32 v{vL16}, 4, v0")
    g(f"v_mov_b32 v{vYa}, 0"); g(f"s_lshl_b32 s3, s{sW}, 2"); g(f"s_add_u32 s3, s3, {L_FLAG}"); g(f"v_mov_b32 v{vPg}, s3")
    g(f"ds_write_b32 v{vPg}, v{vYa}")
    def yload(hi, sPart, n):
        g(f"s_mul_i32 s{sA}, s{sR}, 40960"); g(f"s_mul_i32 s{sB}, s{sPart}, {n*1024}"); g(f"s_add_u32 s{sA}, s{sA}, s{sB}"); g(f"s_add_u32 s{sA}, s{sA}, {YT+hi*32*40960}")
        for i in range(n//2):
            g(f"s_add_u32 m0, s{sB}, {hi*40960+2048*i}"); g(f"s_add_u32 s3, s{sA}, {2048*i}")
            for e in range(2): g(f"buffer_load_dwordx4 v{vL16}, {WS}, s3 offen offset:{1024*e} sc1 lds")
        g("s_waitcnt vmcnt(0) lgkmcnt(0)")
    pre.wait_wg(g,*pre.BY1,vX)
    yload(0,sW,10)
    g("s_barrier")
    tl(g,TRACE[0],DBG3+16384,101,1)
    le0=g.uniq("e0")
    g(f"s_cmp_eq_u32 s{sLam}, 0"); g(f"s_cbranch_scc1 {le0}")
    pre.t4_late(g,sR)
    g(f"v_lshlrev_b32 v{vL16}, 4, v0")
    yload(1,sS,20)
    g(f"s_lshl_b32 s3, s{sW}, 2"); g(f"s_add_u32 s3, s3, {L_FLAG}"); g(f"v_mov_b32 v{vPg}, s3"); g(f"v_mov_b32 v{vYa}, 1")
    g(f"ds_write_b32 v{vPg}, v{vYa}")
    tl(g,TRACE[0],DBG3+16384,101,2)
    g.label(le0)
    g(f"s_lshl_b32 s3, s{sS}, 2"); g(f"s_add_u32 s3, s3, {L_FLAG}"); g(f"v_mov_b32 v{vPg}, s3")
    srd(g, 8, 16, 2048*1280)
    srd(g, 12, 42, 2048*1280)
    g(f"v_lshlrev_b32 v{vL16}, 4, v0"); g(f"v_lshlrev_b32 v{vL8}, 3, v0")
    g(f"v_cmp_lt_u32 vcc, 31, v0"); g(f"v_mov_b32 v{vT}, {OOB}"); g("s_nop 1")
    g(f"v_cndmask_b32 v{vL16c}, v{vL16}, v{vT}, vcc"); g(f"v_cndmask_b32 v{vL8c}, v{vL8}, v{vT}, vcc")
    g(f"s_and_b32 s3, s{sR}, 15")
    xn_addr(g, vXa, t0, 3)
    g(f"v_cndmask_b32 v{vXc}, v{vXa}, v{vT}, vcc")
    near_setup(g,vX)
    g(f"s_lshl_b32 s3, s{sR}, 9"); spread_s(g,3); g(f"s_lshl_b32 s{sA}, s{sLam}, 8"); g(f"s_add_u32 s3, s3, s{sA}"); g(f"s_add_u32 s3, s3, s{sN0 if OPT.get('place',1)==0 else sN1}"); g(f"s_add_u32 s3, s3, {CPB}"); g(f"v_mul_u32_u24 v{vFa}, {CPBS}, v0"); g(f"v_add_u32 v{vFa}, s3, v{vFa}"); g("s_sub_u32 s3, s3, 4"); g(f"v_writelane_b32 v{vFa}, s3, 4")
    g(f"v_lshlrev_b32 v{vFl}, 8, v0"); spread_v(g,vFl,t0); g(f"v_add_u32 v{vFl+1}, s{sN0 if OPT.get('place',1)==1 else sN1}, v{vFl}"); g(f"v_add_u32 v{vFl}, s{sN1}, v{vFl}")
    g(f"v_cmp_lt_u32 vcc, 55, v0"); g("s_nop 1"); g(f"v_cndmask_b32 v{vFl}, v{vFl}, v{vFl+1}, vcc")
    g(f"s_mov_b32 s{sInv}, {hex(f32bits(1/640))}"); g(f"s_mov_b32 s{sEps}, {hex(f32bits(1e-5))}")
    g.label(f"L_{N}_loop")
    g(f"s_lshl_b32 s{sRow}, s{sS}, 5"); g(f"s_add_u32 s{sRow}, s{sRow}, s{sR}"); g(f"s_mul_i32 s{sRow}, s{sRow}, 1280")
    g(f"s_cmp_eq_u32 s{sLam}, 0"); g(f"s_cselect_b32 s3, s{sRow}, {OOB}")
    for i in range(3): g(f"buffer_load_dwordx2 v[{vA+2*i}:{vA+2*i+1}], v{vL8 if i<2 else vL8c}, {WT}, s3 offen offset:{512*i}{OPT.get('xnt','')}")
    ly=g.uniq("yh"); lyd=g.uniq("yhd")
    g(f"s_and_b32 s3, s{sS}, 62"); g(f"s_cmp_lg_u32 s3, 32"); g(f"s_cbranch_scc1 {lyd}")
    g(f"v_mov_b32 v{vT}, {L_FLAG+8}"); g(f"s_mov_b32 s{sTO}, 0")
    g.label(ly)
    g(f"ds_read_b64 v[{vY}:{vY+1}], v{vT}"); g("s_waitcnt lgkmcnt(0)")
    g(f"v_and_b32 v{vY}, v{vY}, v{vY+1}"); g(f"v_cmp_eq_u32 vcc, 0, v{vY}"); g(f"s_cbranch_vccz {lyd}")
    g("s_sleep 8")
    timeout(g, ly)
    g.label(lyd)
    g(f"s_and_b32 s3, s{sS}, 7"); g("s_lshl_b32 s3, s3, 3"); g(f"s_bfe_u32 s{sA}, s{sS}, 0x20003"); g(f"s_lshl_b32 s{sA}, s{sA}, 1"); g(f"s_add_u32 s3, s3, s{sA}")
    g(f"s_lshr_b32 s{sA}, s{sS}, 5"); g(f"s_mul_i32 s{sA}, s{sA}, 40960"); g(f"s_add_u32 s3, s3, s{sA}")
    g(f"v_lshlrev_b32 v{vYa}, 8, v0"); g(f"v_add_u32 v{vYa}, s3, v{vYa}")
    for i in range(8): g(f"ds_read_u16 v{vY+i}, v{vYa} offset:{(i//4)*16384+(i%4)*64}")
    for i in range(4): g(f"v_mov_b32 v{vY+8+i}, 0")
    g("s_mov_b32 exec_hi, 0")
    for i in range(4): g(f"ds_read_u16 v{vY+8+i}, v{vYa} offset:{32768+i*64}")
    g("s_mov_b32 exec_hi, -1")
    g("s_waitcnt vmcnt(0) lgkmcnt(0)")
    for i in range(12): g(f"v_lshlrev_b32 v{vY+i}, 16, v{vY+i}")
    unpack6(g,vX,vA)
    g(f"s_lshl_b32 s{sA}, s{sS}, 2")
    lp=g.uniq("tw"); ld=g.uniq("twd"); lf=g.uniq("twf")
    g(f"s_mov_b32 s{sTO}, 0"); g("s_mov_b64 exec, 31")
    g.label(lp)
    g(f"v_mov_b32 v{vT}, 0")
    g(f"buffer_atomic_add v{vT}, v{vFa}, {WS}, s{sA} offen sc0")
    g("s_waitcnt vmcnt(0)")
    g(f"v_cmp_gt_u32 vcc, 10, v{vT}")
    g("s_and_b32 s3, vcc_lo, 15"); g(f"s_cbranch_scc0 {ld}")
    g("s_bitcmp0_b32 vcc_lo, 4"); g(f"s_cbranch_scc1 {lf}")
    g(f"s_cmp_eq_u32 s{sS}, 0"); g(f"s_cbranch_scc1 {lf}")
    g(f"s_sleep {OPT.get('t4_sleep',24)}")
    g.label(lf)
    g(f"s_sleep {OPT.get('t4_sleep2',1)}")
    timeout(g, lp)
    g.label(ld)
    g("s_mov_b64 exec, -1")
    if OPT.get("t4_dly"): g(f"s_sleep {OPT['t4_dly']}")
    trace(g,sS,0,t0)
    g(f"s_lshl_b32 s{sA}, s{sLam}, 6"); g(f"s_add_u32 s{sA}, s{sA}, s{sS}"); g(f"s_mul_i32 s{sA}, s{sA}, {8*81920}")
    g(f"s_mul_i32 s3, s{sR}, 2560"); g(f"s_add_u32 s{sA}, s{sA}, s3"); g(f"s_add_u32 s{sA}, s{sA}, {PB}")
    for p in range(8):
        for i in range(3): g(f"buffer_load_dwordx4 {q4('v',vP+12*p+4*i)}, v{vL16 if i<2 else vL16c}, {WS}, s{sA} offen offset:{1024*i} sc1{OPT.get('nt','')}")
        g(f"s_add_u32 s{sA}, s{sA}, 81920")
    l0=g.uniq("l0")
    g(f"s_and_b32 s{sB}, s{sS}, 31"); g(f"s_mul_i32 s{sB}, s{sB}, 1536"); g(f"s_add_u32 s{sB}, s{sB}, 81920")
    g(f"v_add_u32 v{vT}, s{sB}, v{vL8}")
    g(f"s_cmp_eq_u32 s{sLam}, 0"); g(f"s_cbranch_scc1 {l0}")
    for i in range(3): g(f"ds_read_b64 v[{vA+2*i}:{vA+2*i+1}], v{vT} offset:{512*i}")
    g("s_waitcnt lgkmcnt(0)")
    unpack6(g,vX,vA)
    g(f"s_add_u32 s3, s{sS}, 1"); g(f"v_mov_b32 v{t0}, s3"); g(f"ds_write_b32 v{vPg}, v{t0}")
    g.label(l0)
    for p in range(1,8):
        g(f"s_waitcnt vmcnt({21-3*p})")
        for i in range(0,12,2): g(f"v_pk_add_f32 v[{vP+i}:{vP+i+1}], v[{vP+i}:{vP+i+1}], v[{vP+12*p+i}:{vP+12*p+i+1}]")
    trace(g,sS,1,t0)
    MIM=OPT.get("mim",1)
    if MIM: rnd_pairs(g,[vP+i for i in range(12)],t2)
    for i in range(0,12,2): g(f"v_pk_add_f32 v[{vX+i}:{vX+i+1}], v[{vX+i}:{vX+i+1}], v[{vP+i}:{vP+i+1}]")
    rnd_pairs(g,[vX+i for i in range(12)],t2)
    layernorm(g,vX,vN,t0,t1,t2,sInv,sEps,mim=MIM)
    for i in range(0,12,2): g(f"v_pk_mul_f32 v[{vN+i}:{vN+i+1}], v[{vN+i}:{vN+i+1}], v[{vY+i}:{vY+i+1}]")
    if MIM: rnd_pairs(g,[vN+i for i in range(12)],t2)
    for i in range(0,12,2): g(f"v_pk_add_f32 v[{vX+i}:{vX+i+1}], v[{vX+i}:{vX+i+1}], v[{vN+i}:{vN+i+1}]")
    pack6(g,vPk,vX)
    l1=g.uniq("l1"); le=g.uniq("le")
    g(f"s_cmp_lg_u32 s{sLam}, 0"); g(f"s_cbranch_scc1 {l1}")
    lg=g.uniq("rg"); lgd=g.uniq("rgd")
    g(f"s_cmp_lt_u32 s{sS}, 32"); g(f"s_cbranch_scc1 {lgd}")
    g(f"s_sub_u32 s{sA}, s{sS}, 31"); g(f"s_mov_b32 s{sTO}, 0")
    g.label(lg)
    g(f"ds_read_b32 v{t0}, v{vPg}"); g("s_waitcnt lgkmcnt(0)")
    g(f"v_cmp_gt_u32 vcc, s{sA}, v{t0}"); g(f"s_cbranch_vccz {lgd}")
    g("s_sleep 8")
    timeout(g, lg)
    g.label(lgd)
    for i in range(3): g(f"ds_write_b64 v{vT}, v[{vPk+2*i}:{vPk+2*i+1}] offset:{512*i}")
    unpack6(g,vX,vPk)
    g("s_nop 0")
    layernorm(g,vX,vN,t0,t1,t2,sInv,sEps,packed=vA,mim=MIM)
    g(f"s_add_u32 s3, s{sRow}, {XN+64*40960}")
    for i in range(3): g(f"buffer_store_dwordx2 v[{vA+2*i}:{vA+2*i+1}], v{vXa if i<2 else vXc}, {WS}, s3 offen offset:{512*i} sc1")
    trace(g,sS,2,t0)
    g("s_waitcnt vmcnt(0) lgkmcnt(0)")
    trace(g,sS,3,t0)
    g(f"s_and_b32 s{sA}, s{sR}, 3"); g(f"s_mul_i32 s{sA}, s{sA}, {CXNS}")
    g(f"s_lshl_b32 s3, s{sS}, 2"); g(f"s_add_u32 s3, s3, s{sA}"); g(f"s_add_u32 s3, s3, {CXN}")
    signal(g, vT, vFl, 3, "-1")
    g(f"s_add_u32 s3, s3, {2*64*256}")
    signal(g, vT, vFl+1, 3, "lo32")
    g(f"s_branch {le}")
    g.label(l1)
    for i in range(3): g(f"buffer_store_dwordx2 v[{vPk+2*i}:{vPk+2*i+1}], v{vL8 if i<2 else vL8c}, {W2}, s{sRow} offen offset:{512*i}{OPT.get('nt','')}")
    g("s_waitcnt vmcnt(0)")
    g.label(le)
    tflush(g,sS,180)
    g(f"s_add_u32 s{sS}, s{sS}, 2")
    g(f"s_cmp_lt_u32 s{sS}, 64"); g(f"s_cbranch_scc1 L_{N}_loop")
    g(f"s_cmp_lg_u32 s{sW}, 3"); g("s_cbranch_scc1 L_bail")
    tl(g,TRACE[0],DBG3+16384,101,3)
    g("s_endpgm")
```

```python
from asmlib import *
from layout import *
import math, struct

WS="s[4:7]"; WT="s[8:11]"
sX,sTK,sW,sTO=48,49,50,51
sPAR=81
TIMEOUT=1<<17
def f32bits(x): return struct.unpack("<I", struct.pack("<f", x))[0]

def timeout(g, back):
    g(f"s_add_u32 s{sTO}, s{sTO}, 1")
    g(f"s_cmp_lt_u32 s{sTO}, {TIMEOUT}")
    g(f"s_cbranch_scc1 {back}")
    g("s_branch L_bail")

def dma_rows64(g, vOff, sOff, n, stride16, sLB, lds_off=0, srdname=WT):
    for i in range(n):
        g(f"s_add_u32 m0, s{sLB}, {lds_off+i*1024}")
        g("s_nop 0")
        g(f"buffer_load_dwordx4 v{vOff}, {srdname}, s{sOff} offen lds")
        g(f"s_add_u32 s{sOff}, s{sOff}, {stride16}")

def dma_voff(g, vD, vT, row_stride):
    g(f"v_lshrrev_b32 v{vD}, 2, v0")
    g(f"s_mov_b32 s3, {row_stride}")
    g(f"v_mul_lo_u32 v{vD}, v{vD}, s3")
    g(f"v_lshrrev_b32 v{vT}, 3, v0")
    g(f"v_and_b32 v{vT}, 2, v{vT}")
    g(f"v_xor_b32 v{vT}, v{vT}, v0")
    g(f"v_and_b32 v{vT}, 3, v{vT}")
    g(f"v_lshl_add_u32 v{vD}, v{vT}, 4, v{vD}")

def tr16_addr(g, vD, vT):
    g(f"v_lshrrev_b32 v{vD}, 2, v0")
    g(f"v_lshlrev_b32 v{vD}, 6, v{vD}")
    g(f"v_and_b32 v{vT}, 3, v0")
    g(f"v_lshl_add_u32 v{vD}, v{vT}, 3, v{vD}")
    g(f"v_and_b32 v{vT}, 16, v0")
    g(f"v_lshl_add_u32 v{vD}, v{vT}, 1, v{vD}")

def fl_voff(g, vD, vT, row_stride, RB):
    n=RB//16; sh={8:3,16:4}[n]
    g(f"v_lshrrev_b32 v{vD}, {sh}, v0"); g(f"s_mov_b32 s3, {row_stride}"); g(f"v_mul_lo_u32 v{vD}, v{vD}, s3")
    if RB==128:
        g(f"v_lshrrev_b32 v{vT}, 3, v0"); g(f"v_and_b32 v{vT}, 6, v{vT}")
    else:
        g(f"v_lshrrev_b32 v{vT}, 3, v0"); g(f"v_and_b32 v{vT}, 6, v{vT}")
    g(f"v_xor_b32 v{vT}, v{vT}, v0"); g(f"v_and_b32 v{vT}, {n-1}, v{vT}")
    g(f"v_lshl_add_u32 v{vD}, v{vT}, 4, v{vD}")
    if RB==256: g(f"v_xor_b32 v{vD+1}, 128, v{vD}" if row_stride%256==0 else f"v_xor_b32 v{vT}, 8, v{vT}\nv_lshrrev_b32 v{vD+1}, 4, v0\nv_mul_lo_u32 v{vD+1}, v{vD+1}, s3\nv_lshl_add_u32 v{vD+1}, v{vT}, 4, v{vD+1}")

def fl_dma(g, vOff, sOff, n, step, sL, lds_off, two=False):
    for i in range(n):
        g(f"s_add_u32 m0, s{sL}, {lds_off+i*1024}"); g("s_nop 0")
        g(f"buffer_load_dwordx4 v{vOff+(i&1 if two else 0)}, {WT}, s{sOff} offen lds")
        g(f"s_add_u32 s{sOff}, s{sOff}, {step}")

MF="v_mfma_f32_16x16x32_bf16"
def q4(k,a): return f"{k}[{a}:{a+3}]"

def chain(g, diag=False, opt=None):
    opt = opt or {}
    N="ch"
    sH,sT,sKV,sRed=52,53,54,55
    sKVc,sP,sMm=16,17,28
    sMEM,sEX,sXC,sPC=56,60,64,68
    mOwn=70
    sA,sB,sC,sLB,sLam,sU,sC1=74,75,76,77,78,79,73
    ST=82
    vL16,vA1,vA2,vA3,vAw,vTst,vRs,vFl,vTmp,vL16b=1,2,3,4,5,6,8,9,10,11
    vSent,vSel,vOne,vBias,vPm,vM0=12,16,20,24,28,34
    vM=36; vAc=116; vQ=128; vK=144
    vKS=36; vVM=68; vS=76; vP=88; vO=92; vLs=108; vOf=36; vW=92; vRD=76; vXR=56; vMx=112
    vKSa,vVSa,vOa,vNeed,vXw,vMrb,vPCw,vPCh,vEXv=160,161,162,164,165,167,168,169,7
    vTst2,vTst3,vRem=163,166,175
    vXr=[170,171,174]
    vRl=172
    vWo=176
    aQ,aK,aV,aVS=0,80,160,240
    L_MEM,L_QK,L_O,L_KV=0,20480,24576,28672
    TP=opt.get("tp",0)
    PA,PB_=[0,3],[1,2,4]
    POS=(lambda jj,i: 2*jj+PA.index(i) if i in PA else 8+3*jj+PB_.index(i)) if TP else (lambda jj,i: 5*jj+i)
    cold=[]
    stamp_i=[0]
    PTS=opt.get("pts",["mem","kdone","qok","kok","ostg","wo","red","xc"])
    def stamp(n):
        if diag and n in PTS:
            i=PTS.index(n); g(f"s_memrealtime s[{ST+2*i}:{ST+2*i+1}]")
    def dly(k):
        n=opt.get(k,0)
        while n>0:
            m=min(n,4); g(f"s_nop {4*m-1}"); n-=m
    def retry(back, pre=()):
        l=g.uniq("rt")
        g(f"s_cbranch_vccnz {l}")
        def f():
            g.label(l)
            for x in pre: g(x)
            timeout(g, back)
        cold.append(f)
    g.label(f"L_{N}")
    if opt.get("ldiag"): g("s_memrealtime s[92:93]"); g("s_waitcnt lgkmcnt(0)")
    if diag: g.raw("; PTS "+" ".join(PTS))
    g(f"s_lshr_b32 s{sH}, s{sTK}, 1"); g(f"s_lshl_b32 s3, s{sX}, 3"); g(f"s_add_u32 s{sH}, s{sH}, s3")
    g(f"s_and_b32 s{sP}, s{sTK}, 1")
    g(f"s_lshr_b32 s{sLam}, s{sW}, 1")
    g(f"s_and_b32 s{sC}, s{sW}, 1")
    g(f"s_mul_i32 s{sLB}, s{sLam}, 81920")
    srd(g, 8, 26, 4096*1280)
    fl_voff(g, vTmp, vL16b, 1280, 128)
    g(f"s_mul_i32 s{sKV}, s{sH}, {128*1280}"); g(f"s_mul_i32 s3, s{sP}, 640"); g(f"s_add_u32 s{sKV}, s{sKV}, s3"); g(f"s_mul_i32 s3, s{sW}, {32*1280}"); g(f"s_add_u32 s{sKV}, s{sKV}, s3")
    g(f"s_lshl_b32 s{sU}, s{sW}, 12")
    for st in range(5):
        g(f"s_add_u32 s{sA}, s{sKV}, {128*st}")
        fl_dma(g, vTmp, sA, 4, 8*1280, sU, 81920+st*16384)
    fl_voff(g, vTmp, vL16b, 8192, 128)
    g(f"s_lshl_b32 s{sA}, s{sH}, 8"); g(f"s_lshl_b32 s3, s{sP}, 7"); g(f"s_add_u32 s{sA}, s{sA}, s3")
    g(f"s_mul_i32 s3, s{sW}, {160*8192}"); g(f"s_add_u32 s{sA}, s{sA}, s3")
    g(f"s_mul_i32 s{sU}, s{sW}, 20480")
    srd(g, 8, 24, 640*8192)
    fl_dma(g, vTmp, sA, 20, 8*8192, sU, 0)
    g(f"s_cmp_eq_u32 s{sP}, 0"); g("s_cselect_b32 s8, s20, s22"); g("s_cselect_b32 s9, s21, s23"); g("s_and_b32 s9, s9, 0xffff")
    fl_voff(g, vM, vL16b, 8192, 256)
    def wdma(half):
        g(f"s_lshl_b32 s{sA}, s{sH}, 8"); g(f"s_mul_i32 s3, s{sW}, {80*8192}"); g(f"s_add_u32 s{sA}, s{sA}, s3"); g(f"s_add_u32 s{sA}, s{sA}, {half*320*8192}")
        fl_dma(g, vM, sA, 20, 4*8192, sU, half*81920, two=True)
    g(f"v_lshlrev_b32 v{vL16}, 4, v0")
    g(f"v_lshrrev_b32 v{vA1}, 2, v0"); g(f"v_lshlrev_b32 v{vA1}, 7, v{vA1}")
    g(f"v_and_b32 v{vA2}, 3, v0"); g(f"v_lshl_add_u32 v{vA1}, v{vA2}, 3, v{vA1}")
    g(f"v_and_b32 v{vA2}, 24, v0"); g(f"v_lshl_add_u32 v{vA1}, v{vA2}, 2, v{vA1}")
    g(f"s_lshl_b32 s3, s{sW}, 5"); g(f"v_xor_b32 v{vA3}, s3, v{vA1}")
    for i in range(4): g(f"v_mov_b32 v{vSent+i}, -1")
    for i in range(4): g(f"v_mov_b32 v{vOne+i}, 0x3f803f80")
    for i in range(6): g(f"v_mov_b32 v{vPm+i}, 0")
    for i in range(32): g(f"v_mov_b32 v{vQ+i}, 0")
    g("s_waitcnt vmcnt(20)"); g("s_barrier")
    for x in range(5):
        g(f"s_mul_i32 s{sA}, s{sLam}, 10")
        if x<4: g(f"s_mul_i32 s3, s{sC}, 6"); g(f"s_add_u32 s{sA}, s{sA}, s3"); g(f"s_add_u32 s{sA}, s{sA}, {x}")
        else: g(f"s_add_u32 s{sA}, s{sA}, s{sC}"); g(f"s_add_u32 s{sA}, s{sA}, 4")
        g(f"s_and_b32 s3, s{sA}, 3"); g("s_lshl_b32 s3, s3, 5"); g(f"v_xor_b32 v{vA2}, s3, v{vA1}")
        g(f"s_lshr_b32 s3, s{sA}, 2"); g("s_lshl_b32 s3, s3, 14"); g("s_add_u32 s3, s3, 81920"); g(f"v_add_u32 v{vA2}, s3, v{vA2}")
        for j in range(4):
            b=vWo+32*(x>>1)+8*j+4*(x&1) if x<4 else vWo+64+4*j
            g(f"ds_read_b64_tr_b16 v[{b}:{b+1}], v{vA2} offset:{j*4096}")
            g(f"ds_read_b64_tr_b16 v[{b+2}:{b+3}], v{vA2} offset:{j*4096+2048}")
    g("s_waitcnt lgkmcnt(0)"); g("s_barrier")
    def tr_w(base, half, keep):
        g(f"s_waitcnt vmcnt({keep})"); g("s_barrier")
        for j in range(4):
            g(f"s_xor_b32 s3, s{sW}, {j}"); g(f"s_mul_i32 s3, s3, 20480"); g(f"s_add_u32 s3, s3, {half*81920}"); g(f"v_add_u32 v{vA2}, s3, v{vA3}")
            for ii in range(5):
                b=base+4*POS(j,ii)
                g(f"ds_read_b64_tr_b16 a[{b}:{b+1}], v{vA2} offset:{ii*4096}")
                g(f"ds_read_b64_tr_b16 a[{b+2}:{b+3}], v{vA2} offset:{ii*4096+2048}")
        g("s_waitcnt lgkmcnt(0)"); g("s_barrier")
    tl(g,opt.get("trace"),DBG3+16384,101,1,vM+4)
    wdma(1)
    tr_w(aV,0,20)
    wdma(0)
    import pre, bulk
    vT1,vT2,vT3=vM+4,vM+5,vM+6
    g(f"s_mul_i32 s{sB}, s{sP}, 10"); g(f"s_mul_i32 s3, s{sLam}, 5"); g(f"s_add_u32 s{sB}, s{sB}, s3")
    g(f"s_mul_i32 s{sA}, s{sH}, 20480"); g(f"s_lshl_b32 s3, s{sB}, 10"); g(f"s_add_u32 s{sA}, s{sA}, s3")
    g(f"s_mul_i32 s3, s{sC}, 3072"); g(f"s_add_u32 s3, s3, s{sA}"); g(f"v_add_u32 v{vPCw}, s3, v{vL16}")
    g(f"s_lshl_b32 s3, s{sC}, 3"); g(f"s_add_u32 s3, s3, s{sA}"); g(f"s_add_u32 s3, s3, 2048"); g(f"v_add_u32 v{vPCh}, s3, v{vL16}")
    for s_ in range(4):
        g(f"s_mul_i32 s3, s{sX}, 20480");  g(f"s_add_u32 s{sMEM+s_}, s3, {MEM+s_*4*20480}")
        g(f"s_mul_i32 s3, s{sH}, 12288");  g(f"s_add_u32 s{sEX+s_}, s3, {EX+s_*32*12288}")
    for s_ in range(2): g(f"s_mov_b32 s{sPC+s_}, {PC+s_*32*20480}")
    g(f"v_add_u32 v{vL16b}, 4096, v{vL16}")
    for j,va in ((1,vA1),(2,vA2),(3,vA3),(0,vAw)):
        g(f"s_xor_b32 s3, s{sW}, {j}"); g(f"s_mul_i32 s3, s3, 5120"); g(f"v_add_u32 v{va}, s3, v{vL16}")
    g(f"s_mul_i32 s{sMm}, s{sW}, 5120")
    g(f"v_add_u32 v{vMrb}, 4096, v{vAw}")
    g(f"s_lshl_b32 s3, s{sP}, 11"); g(f"s_lshl_b32 s{sB}, s{sLam}, 10"); g(f"s_add_u32 s3, s3, s{sB}"); g(f"s_lshl_b32 s{sB}, s{sC}, 3"); g(f"s_add_u32 s3, s3, s{sB}")
    g(f"s_add_u32 s3, s3, 8192"); g(f"v_add_u32 v{vTst3}, s3, v{vL16}")
    g(f"s_lshl_b32 s3, s{sW}, 10"); g(f"v_add_u32 v{vTst2}, s3, v{vL16}")
    g(f"s_lshl_b32 s3, s{sP}, 12"); g(f"v_add_u32 v{vTst}, s3, v{vTst2}")
    g(f"v_and_b32 v{vRem}, 55, v0"); g(f"s_lshl_b32 s3, s{sLam}, 3"); g(f"v_or_b32 v{vRem}, s3, v{vRem}"); g(f"v_lshlrev_b32 v{vRem}, 4, v{vRem}")
    g(f"v_xor_b32 v{vTmp}, s3, v0"); g(f"v_and_b32 v{vTmp}, 8, v{vTmp}"); g(f"v_lshl_add_u32 v{vRem}, v{vTmp}, 8, v{vRem}")
    g(f"s_xor_b32 s3, s{sP}, 1"); g("s_lshl_b32 s3, s3, 12"); g(f"v_add_u32 v{vRem}, s3, v{vRem}")
    g(f"s_lshl_b32 s3, s{sLam}, 13"); g(f"v_add_u32 v{vKSa}, s3, v{vL16}")
    g(f"s_lshl_b32 s{sB}, s{sC}, 12"); g(f"v_add_u32 v{vVSa}, s{sB}, v{vKSa}")
    g(f"s_lshl_b32 s{sB}, s{sC}, 11"); g(f"v_add_u32 v{vOa}, s{sB}, v{vL16}")
    g(f"v_add_u32 v{vEXv}, 8192, v{vOa}")
    g(f"s_lshl_b32 s{sU}, s{sTK}, 1"); g(f"s_add_u32 s{sU}, s{sU}, s{sC}")
    g(f"s_mov_b32 s{sRed}, s{sLam}")
    g(f"s_lshr_b32 s3, s{sTK}, 1"); g(f"s_add_u32 s3, s3, 32")
    g(f"s_lshl_b32 s{sB}, s{sP}, 2"); g(f"s_add_u32 s{sB}, s{sB}, s{sW}")
    g(f"s_cmp_eq_u32 s{sB}, 1"); g(f"s_cselect_b32 s{sU}, s3, s{sU}"); g(f"s_cselect_b32 s{sRed}, 1, s{sRed}")
    if TP:
        g(f"s_lshr_b32 s{sA}, s{sTK}, 1")
        g(f"s_lshr_b32 s3, s{sA}, 1"); g(f"s_mul_i32 s{sU}, s3, 10"); g(f"s_and_b32 s3, s{sA}, 1"); g(f"s_mul_i32 s3, s3, 6"); g(f"s_add_u32 s{sU}, s{sU}, s3"); g(f"s_add_u32 s{sU}, s{sU}, s{sC}")
        g(f"s_and_b32 s3, s{sA}, 1"); g("s_mul_i32 s3, s3, 3"); g(f"s_add_u32 s3, s3, s{sW}"); g("s_sub_u32 s3, s3, 1")
        g(f"s_add_u32 s{sB}, s3, 2"); g("s_cmp_ge_u32 s3, 4"); g("s_cselect_b32 s3, 2, 0"); g(f"s_add_u32 s{sB}, s{sB}, s3")
        g(f"s_lshr_b32 s3, s{sA}, 1"); g("s_mul_i32 s3, s3, 10"); g(f"s_add_u32 s{sB}, s{sB}, s3")
        g(f"s_cmp_eq_u32 s{sP}, 0"); g(f"s_cselect_b32 s{sU}, s{sB}, s{sU}")
        g(f"s_cmp_eq_u32 s{sRed}, 0"); g(f"s_cselect_b32 s{sU}, 0, s{sU}")
    g(f"v_lshrrev_b32 v{vRl}, 4, v0"); g(f"s_mov_b32 s3, 20480"); g(f"v_mul_lo_u32 v{vRl}, v{vRl}, s3")
    g(f"v_and_b32 v{vTmp}, 15, v0"); g(f"v_lshl_add_u32 v{vRl}, v{vTmp}, 4, v{vRl}")
    g(f"s_lshl_b32 s3, s{sU}, 9"); g(f"s_mul_i32 s{sB}, s{sX}, {8*20480}"); g(f"s_add_u32 s{sB}, s{sB}, s3")
    g(f"v_add_u32 v{vRl}, s{sB}, v{vRl}"); g(f"v_add_u32 v{vRl+1}, {4*20480}, v{vRl}")
    g(f"v_lshrrev_b32 v{vRs}, 5, v0"); g(f"v_lshlrev_b32 v{vRs}, 8, v{vRs}"); g(f"v_lshl_add_u32 v{vRs}, v{vTmp}, 4, v{vRs}")
    g(f"v_and_b32 v{vM}, 16, v0"); g(f"v_lshrrev_b32 v{vM}, 1, v{vM}"); g(f"v_add3_u32 v{vRs}, v{vRs}, v{vM}, s3")
    g(f"s_lshr_b32 s3, s{sU}, 4"); g("s_lshl_b32 s3, s3, 14")
    g(f"s_and_b32 s{sB}, s{sU}, 15"); g(f"s_lshl_b32 s{sB}, s{sB}, 9"); g(f"s_add_u32 s3, s3, s{sB}")
    for k,vv in enumerate([vXw]+vXr):
        g(f"s_xor_b32 s{sB}, s{sX}, {k}"); g(f"s_mul_i32 s{sB}, s{sB}, {XCS}"); g(f"s_add_u32 s{sB}, s{sB}, s3"); g(f"v_lshl_add_u32 v{vv}, v0, 3, s{sB}")
    g(f"s_cmp_eq_u32 s{sRed}, 0"); g(f"s_cselect_b32 s3, {OOB}, 0"); g(f"v_add_u32 v{vXw}, s3, v{vXw}"); g(f"v_add_u32 v{vRs}, s3, v{vRs}")
    g(f"s_cmp_eq_u32 s{sLam}, 0"); g(f"s_mov_b32 s3, 0xff00ff00"); g(f"s_cselect_b32 s{mOwn}, 0x00ff00ff, s3"); g(f"s_mov_b32 s{mOwn+1}, s{mOwn}")
    g(f"v_and_b32 v{vFl}, 3, v0"); g(f"v_lshlrev_b32 v{vFl}, 2, v{vFl}"); g(f"s_lshl_b32 s3, s{sH}, 7"); g(f"s_add_u32 s3, s3, {FLW}"); g(f"v_add_u32 v{vFl}, s3, v{vFl}")
    g(f"v_mov_b32 v{vNeed}, 0")
    g(f"v_and_b32 v{vTmp}, 7, v0")
    for r in range(4):
        g(f"v_mov_b32 v{vSel+r}, 0")
        g(f"v_cmp_eq_u32 vcc, {2*r}, v{vTmp}"); g(f"v_mov_b32 v{vM}, 0x3f80"); g(f"s_nop 1")
        g(f"v_cndmask_b32 v{vSel+r}, v{vSel+r}, v{vM}, vcc")
        g(f"v_cmp_eq_u32 vcc, {2*r+1}, v{vTmp}"); g(f"v_mov_b32 v{vM}, 0x3f800000"); g(f"s_nop 1")
        g(f"v_cndmask_b32 v{vSel+r}, v{vSel+r}, v{vM}, vcc")
    g(f"v_lshrrev_b32 v{vTmp}, 5, v0"); g(f"v_cmp_ne_u32 vcc, s{sLam}, v{vTmp}"); g(f"v_mov_b32 v{vM}, 0xff61b1e6"); g(f"s_nop 1")
    for r in range(4): g(f"v_cndmask_b32 v{vBias+r}, 0, v{vM}, vcc")
    srd(g, 8, 18, 8*1280)
    g(f"s_lshl_b32 s3, s{sU}, 1"); g(f"v_lshrrev_b32 v{vM}, 5, v0"); g(f"v_add_u32 v{vM}, s3, v{vM}")
    g(f"v_lshrrev_b32 v{vM+1}, 2, v{vM}"); g(f"v_lshlrev_b32 v{vM+1}, 6, v{vM+1}"); g(f"v_and_b32 v{vM}, 3, v{vM}"); g(f"v_lshl_add_u32 v{vM+1}, v{vM}, 3, v{vM+1}")
    g(f"v_and_b32 v{vTmp}, 7, v0"); g(f"s_mov_b32 s3, 1280"); g(f"v_mul_lo_u32 v{vTmp}, v{vTmp}, s3")
    g(f"v_and_b32 v{vM}, 16, v0"); g(f"v_lshl_add_u32 v{vTmp}, v{vM}, 1, v{vTmp}"); g(f"v_add_u32 v{vTmp}, v{vTmp}, v{vM+1}")
    g(f"buffer_load_dwordx2 v[{vM0}:{vM0+1}], v{vTmp}, {WT}, 0 offen")
    g(f"s_mov_b32 s{sC1}, {hex(f32bits(128**-0.5*math.log2(math.e)))}")
    bulk.hblk(g,sKV,sH); g(f"s_add_u32 s{sKV}, s{sKV}, {KQ}")
    pre.dbsrd(g)
    g(f"v_lshlrev_b32 v{vM+7}, 2, v0")
    g(f"buffer_load_dword v{vM+8}, v{vM+7}, {pre.DB}, 0 offen sc1")
    g(f"v_lshrrev_b32 v{vT1}, 2, v0"); g(f"v_and_b32 v{vT2}, 7, v{vT1}"); g(f"s_lshl_b32 s3, s{sW}, 1"); g(f"v_xor_b32 v{vT2}, s3, v{vT2}")
    g(f"v_lshlrev_b32 v{vT1}, 8, v{vT1}"); g(f"v_lshl_add_u32 v{vT1}, v{vT2}, 5, v{vT1}"); g(f"v_and_b32 v{vT2}, 3, v0"); g(f"v_lshl_add_u32 v{vT1}, v{vT2}, 3, v{vT1}")
    g("s_waitcnt vmcnt(0)")
    lsl=g.uniq("cs"); lok=g.uniq("ck")
    g(f"s_lshl_b32 s3, s{sX}, 3"); g(f"v_readlane_b32 s{sA}, v{vM+8}, {(pre.BA[0]+128)//4}"); g(f"v_readlane_b32 s{sPAR}, v{vM+8}, 36"); g(f"v_readlane_b32 s{sB}, v{vM+8}, s3")
    g(f"s_mov_b32 s{bulk.sSlow}, 0"); g("s_nop 2")
    g(f"s_sub_u32 s{sPAR}, s{sPAR}, 1")
    g(f"s_cmp_eq_u32 s{sA}, 0"); g(f"s_cbranch_scc1 {lsl}")
    g(f"s_cmp_ge_u32 s{sB}, {999 if opt.get('force_slow') else 32}"); g(f"s_cbranch_scc1 {lok}")
    g.label(lsl)
    pre.wait_bar(g,*pre.BA,vM)
    bulk.group_local(g,vM)
    g.label(lok)
    g(f"buffer_store_dwordx2 v[{vM0}:{vM0+1}], v{vRs}, {WS}, s{sMEM} offen sc1")
    g(f"buffer_load_dword v{vTmp}, v{vFl}, {WS}, 0 offen sc1")
    g("s_barrier")
    for j in range(4):
        g(f"s_xor_b32 s3, s{sW}, {j}"); g(f"s_mul_i32 s3, s3, 40960"); g(f"v_add_u32 v{vT2}, s3, v{vT1}"); g(f"v_xor_b32 v{vT3}, 32, v{vT2}")
        for ii in range(5):
            for t in range(2):
                b=80*t+4*POS(j,ii)
                g(f"ds_read_b64_tr_b16 a[{b}:{b+1}], v{vT2 if t==0 else vT3} offset:{ii*8192}")
                g(f"ds_read_b64_tr_b16 a[{b+2}:{b+3}], v{vT2 if t==0 else vT3} offset:{ii*8192+4096}")
    g("s_waitcnt lgkmcnt(0)"); g("s_barrier")
    tl(g,opt.get("trace"),DBG3+16384,101,2,vM)
    g(f"s_mov_b32 s{sT}, -1")

    def kvdma(lo,hi,gap):
        for i in range(lo,hi):
            reg=i//8
            if opt.get("direct"): reg=[1,3,0,2][reg]
            kv,lam=reg>>1,reg&1
            if i%8==0 or i==lo:
                g(f"s_add_u32 s{sA}, s{sT}, {1-LAG*lam}" if 1-LAG*lam>=0 else f"s_sub_u32 s{sA}, s{sT}, {LAG*lam-1}")
                bulk.blk(g,3,sA,sKV,0); g(f"s_add_u32 s3, s3, {kv*(VO-KQ)+lam*LST}")
                g(f"s_cmp_lt_u32 s{sA}, 64"); g(f"s_cselect_b32 s{sKVc}, s3, {OOB}")
            if i%4==0 or i==lo:
                g(f"s_mov_b32 m0, {L_KV+reg*8192+((i//4)&1)*4096}"); g("s_nop 0")
            g(f"buffer_load_dwordx4 v{vL16 if (i//4)%2==0 else vL16b}, {WS}, s{sKVc} offen offset:{1024*(i%4)} sc1 lds")
            if gap: g(f"s_nop {gap-1}")
    def loader(n1,gap):
        lend=g.uniq("ld")
        g(f"s_cmp_lg_u32 s{sW}, 0"); g(f"s_cbranch_scc1 {lend}")
        g(f"s_add_u32 s{sA}, s{sT}, 1"); g(f"s_sub_u32 s{sB}, s{sA}, {LAG}")
        g(f"s_add_u32 s3, s{sA}, 1"); g(f"s_cmp_lt_u32 s{sA}, 64"); g(f"s_cselect_b32 s3, s3, 0"); g(f"v_writelane_b32 v{vNeed}, s3, 0")
        g(f"s_add_u32 s3, s{sB}, 1"); g(f"s_cmp_lt_u32 s{sB}, 64"); g(f"s_cselect_b32 s3, s3, 0"); g(f"v_writelane_b32 v{vNeed}, s3, 1")
        g(f"s_max_i32 s3, s{sT}, 0"); g("s_min_u32 s3, s3, 64"); g(f"v_writelane_b32 v{vNeed}, s3, 2")
        g(f"s_cmp_gt_i32 s{sT}, {LAG}"); g(f"s_cselect_b32 s3, s{sT}, 0"); g(f"v_writelane_b32 v{vNeed}, s3, 3")
        if opt.get("free"):
            g("s_mov_b32 s3, 0")
            for i in range(2 if opt["free"]==1 else 4): g(f"v_writelane_b32 v{vNeed}, s3, {i}")
        if n1 is None:
            g(f"buffer_load_dword v{vTmp}, v{vFl}, {WS}, 0 offen sc1")
            g("s_waitcnt vmcnt(0)")
        else:
            g("s_waitcnt vmcnt(0)")
            flagwait()
            kvdma(0,n1,gap)
        g.label(lend)
    def flagwait():
        lf=g.uniq("fl"); lfd=g.uniq("fld")
        g.label(lf)
        g(f"v_cmp_gt_u32 vcc, v{vNeed}, v{vTmp}")
        g(f"s_cbranch_vccz {lfd}")
        g(f"buffer_load_dword v{vTmp}, v{vFl}, {WS}, 0 offen sc1")
        g("s_waitcnt vmcnt(0)")
        timeout(g, lf)
        g.label(lfd)
    g(f"s_xor_b32 s29, s{sPAR}, {((PROBE>>21)^opt.get('cfar',0))&1}"); g("s_lshl_b32 s29, s29, 13")
    DIR=opt.get("direct",0); sC2,vC2=30,113+2
    if DIR:
        g(f"s_lshl_b32 s{sC2}, s{sH}, 8"); g(f"s_add_u32 s{sC2}, s{sC2}, s29"); g(f"s_add_u32 s{sC2}, s{sC2}, {CQKV1+4*(1-LAG)}")
        g(f"s_cmp_lg_u32 s{sW}, 0"); g(f"s_cselect_b32 s{sC2}, {OOB}, s{sC2}")
    def c2poll():
        g(f"v_mov_b32 v{vC2}, 0"); g("s_mov_b64 exec, 1")
        g(f"buffer_atomic_add v{vC2}, off, {WS}, s{sC2} sc0")
        g("s_mov_b64 exec, -1")
    loader(32,0)
    def xcbases():
        for s_ in range(4):
            g(f"s_xor_b32 s3, s{sPAR}, {(((XC>>21)+s_)^(PROBE>>21)^opt.get('far',0))&1}"); g("s_and_b32 s3, s3, 1"); g("s_lshl_b32 s3, s3, 13")
            g(f"s_add_u32 s{sXC+s_}, s3, {XC+(s_<<21)}")
    xcbases()
    assert not DIR
    tl(g,opt.get("trace"),DBG3+16384,101,3,vM)
    g(f"s_mov_b32 s{sT}, 0")
    if opt.get("ldiag")==2: g("s_memrealtime s[94:95]"); g("s_waitcnt lgkmcnt(0)")
    g(f"s_cmp_lg_u32 s{bulk.sSlow}, 0"); g(f"s_cbranch_scc1 L_{N}_loops")
    for LS,LN in (("","f"),(" sc1","s")):
        if opt.get("al") is not None:
            g.raw(".p2align 6, , 63" if False else ".p2align 8")
            for _ in range(opt["al"]): g("s_nop 0")
        g.label(f"L_{N}_loop{LN}")
        g.amf=bool(opt.get("amf"))
        for U in range(4):
            stamp_i[0]=0
            s4=U; s4n=(U+1)&3; s4z=(U+3)&3; s4y=(U+2)&3; s2=U&1; ph=1-((U>>1)&1)
            EXs=f"s{sEX+s4}"
            if opt.get("alu") and U>0:
                g.raw(f".p2align {opt['alu']}")
                for _ in range(opt["al"]%(1<<(opt['alu']-2))): g("s_nop 0")
            g(f"s_mov_b32 s{sTO}, 0")
            if opt.get("ldiag") and U==0:
                for tv,sr_ in ((8,84),(60,88)):
                    l=g.uniq("lt"); g(f"s_cmp_lg_u32 s{sT}, {tv}"); g(f"s_cbranch_scc1 {l}")
                    g(f"s_memrealtime s[{sr_}:{sr_+1}]"); g(f"s_memtime s[{sr_+2}:{sr_+3}]"); g("s_waitcnt lgkmcnt(0)"); g.label(l)
            dly("dly_mem")
            def mloads(j,s4=s4):
                L=[]
                if j<4: L+=[f"s_mov_b32 m0, s{sMm}","s_nop 0"]+[f"buffer_load_dwordx4 v{vAw}, {WS}, s{sMEM+s4} offen offset:{1024*i} sc1 lds" for i in range(j,4)]
                return L+[f"s_add_u32 m0, s{sMm}, 4096","s_nop 0",f"buffer_load_dwordx4 v{vMrb}, {WS}, s{sMEM+s4} offen sc1 lds"]
            def pm(t,i):
                d=q4('v',vAc+4*t); w=q4('a',80*t+4*i); x=q4('v',vM+4*i)
                return f"{MF} {d}, {x if t==2 else w}, {w if t==2 else x}, {'0' if i==0 else d}"
            if TP:
                def dmas(P,s4=s4):
                    L=[f"s_mov_b32 m0, s{sMm}","s_nop 0"]
                    for i in P:
                        if i==4: L+=[f"s_add_u32 m0, s{sMm}, 4096","s_nop 0",f"buffer_load_dwordx4 v{vMrb}, {WS}, s{sMEM+s4} offen sc1 lds"]
                        else: L.append(f"buffer_load_dwordx4 v{vAw}, {WS}, s{sMEM+s4} offen offset:{1024*i} sc1 lds")
                    return L
                rdp=lambda jj,i: f"ds_read_b128 {q4('v',vM+4*POS(jj,i))}, v{[vAw,vA1,vA2,vA3][jj]} offset:{L_MEM+1024*i}"
                def mx(P):
                    R=[vM+4*n+h for n in P for h in (0,2)]
                    return [f"v_max_u32 v{vTmp}, v{R[0]}, v{R[1]}"]+[f"v_max3_u32 v{vTmp}, v{vTmp}, v{R[i]}, v{R[i+1]}" for i in range(2,len(R),2)]+[f"v_cmp_eq_u32 vcc, -1, v{vTmp}"]
                stamp("mld")
                for x in dmas(PA): g(x)
                lq=g.uniq("tb")
                g(f"s_cmp_eq_u32 s{sP}, 0"); g(f"s_cbranch_scc1 {lq}")
                dly("dly_b1")
                g.label(lq)
                dly("dly_b0")
                for x in dmas(PB_): g(x)
                lp=g.uniq("pa")
                g("s_waitcnt vmcnt(3)")
                g.label(lp)
                for i in PA: g(rdp(0,i))
                g("s_waitcnt lgkmcnt(0)")
                for x in mx([0,1]): g(x)
                retry(lp, dmas(PA)+dmas(PB_)+["s_waitcnt vmcnt(3)"])
                stamp("mem")
                g("s_barrier")
                stamp("b1")
                for jj in range(1,4):
                    for i in PA: g(rdp(jj,i))
                for m in [pm(0,0),pm(1,0),pm(0,1),pm(1,1),pm(2,0),pm(2,1)]: g(m)
                g(f"buffer_store_dwordx2 v[{vSent}:{vSent+1}], v{vXw}, {WS}, s{sXC+s4y} offen sc1") if False else None
                BA=opt.get("ba",3)
                out=6
                for k in range(6):
                    g(f"s_waitcnt lgkmcnt({out-1})"); out-=1
                    g(pm(0,2+k)); g(pm(1,2+k))
                    if k==BA-1:
                        g("s_waitcnt vmcnt(0)")
                        for i in PB_: g(rdp(0,i))
                        out+=3
                    if k==BA:
                        lp=g.uniq("pb")
                        g("s_waitcnt lgkmcnt(0)"); out=5-k
                        g.label(lp)
                        for x in mx([8,9,10]): g(x)
                        retry(lp, dmas(PB_)+["s_waitcnt vmcnt(0)"]+[rdp(0,i) for i in PB_]+["s_waitcnt lgkmcnt(0)"])
                        g("s_barrier")
                        for jj in range(1,4):
                            for i in PB_: g(rdp(jj,i))
                        out+=9
                        g(f"buffer_store_dwordx2 v[{vSent}:{vSent+1}], v{vXw}, {WS}, s{sXC+s4y} offen sc1")
                for n in (8,9,10): g(pm(0,n)); g(pm(1,n))
                for k in range(9):
                    g(f"s_waitcnt lgkmcnt({8-k})")
                    g(pm(0,11+k)); g(pm(1,11+k))
                if diag: g(f"s_mov_b32 s12, s{sTO}")
                rem_loads=[f"buffer_load_dwordx4 {q4('v',vK+4*i)}, v{vRem}, {WS}, {EXs} offen offset:{1024*i} sc1" for i in range(2)]
                vm_loads=[f"buffer_load_dwordx4 {q4('v',vVM+4*i)}, v{vEXv}, {WS}, {EXs} offen offset:{1024*i} sc1" for i in range(2)]
            else:
                MR=opt.get("mreg",0)
                if MR: mloads=lambda j,s4=s4: [f"buffer_load_dwordx4 {q4('v',vM+4*i)}, v{vAw if i<4 else vMrb}, {WS}, s{sMEM+s4} offen offset:{1024*i if i<4 else 0} sc1" for i in range(j,5)]
                stamp("mld")
                for x in mloads(0): g(x)
                NE=opt.get("ne",4)
                lm=[g.uniq("pm") for i in range(5)]
                def mchk(i):
                    g(f"v_max_u32 v{vTmp}, v{vM+4*i}, v{vM+4*i+2}"); g(f"v_cmp_eq_u32 vcc, -1, v{vTmp}")
                    if opt.get("m2",0):
                        lc=g.uniq("mc"); lb=g.uniq("mb")
                        g(f"s_cbranch_vccnz {lc}")
                        g.label(lb)
                        def mc(lc=lc,lb=lb,i=i,s4=s4):
                            ld=lambda r: f"buffer_load_dwordx4 {q4('v',r)}, v{vAw if i<4 else vMrb}, {WS}, s{sMEM+s4} offen offset:{1024*i if i<4 else 0} sc1"
                            A,B=vM+4*i,vM+76
                            g.label(lc)
                            if opt["m2"]==1:
                                g(ld(A)); g("s_waitcnt vmcnt(0)")
                                g(f"v_max_u32 v{vTmp}, v{A}, v{A+2}"); g(f"v_cmp_eq_u32 vcc, -1, v{vTmp}")
                                lo=g.uniq("mo"); g(f"s_cbranch_vccz {lo}")
                                timeout(g, lc)
                                g.label(lo)
                            else:
                                l2=g.uniq("m2"); lo=g.uniq("mo"); lB=g.uniq("mB")
                                g(ld(A)); g(f"s_nop {opt.get('m2g',15)}"); g(f"s_nop {opt.get('m2g',15)}")
                                g.label(l2)
                                g(ld(B)); g("s_waitcnt vmcnt(1)")
                                g(f"v_max_u32 v{vTmp}, v{A}, v{A+2}"); g(f"v_cmp_eq_u32 vcc, -1, v{vTmp}"); g(f"s_cbranch_vccz {lo}")
                                g(ld(A)); g("s_waitcnt vmcnt(1)")
                                g(f"v_max_u32 v{vTmp}, v{B}, v{B+2}"); g(f"v_cmp_eq_u32 vcc, -1, v{vTmp}"); g(f"s_cbranch_vccz {lB}")
                                timeout(g, l2)
                                g.label(lB)
                                g(f"ds_write_b128 v{vAw}, {q4('v',B)} offset:{L_MEM+1024*i}")
                                g("s_waitcnt vmcnt(0) lgkmcnt(0)")
                                g(f"s_branch {lb}")
                                g.label(lo)
                            g(f"ds_write_b128 v{vAw}, {q4('v',A)} offset:{L_MEM+1024*i}")
                            g("s_waitcnt lgkmcnt(0)" if opt["m2"]==1 else "s_waitcnt vmcnt(0) lgkmcnt(0)")
                            g(f"s_branch {lb}")
                        cold.append(mc)
                    else:
                        retry(lm[i], mloads(i)+[f"s_waitcnt vmcnt({4-i})", f"ds_read_b128 {q4('v',vM+4*i)}, v{vAw} offset:{L_MEM+1024*i}"])
                    if i<NE: g(pm(0,i)); g(pm(1,i))
                if opt.get("m1",0):
                    g.label(lm[0])
                    for i in range(5):
                        g(f"s_waitcnt vmcnt({4-i})")
                        g(f"ds_write_b128 v{vAw}, {q4('v',vM+4*i)} offset:{L_MEM+1024*i}" if MR else f"ds_read_b128 {q4('v',vM+4*i)}, v{vAw} offset:{L_MEM+1024*i}")
                        n=i if MR else i-1
                        if n>=0:
                            if not MR: g("s_waitcnt lgkmcnt(1)")
                            g(f"v_max_u32 v{vTmp}, v{vM}, v{vM+2}" if n==0 else f"v_max3_u32 v{vTmp}, v{vTmp}, v{vM+4*n}, v{vM+4*n+2}")
                            if n<NE: g(pm(0,n)); g(pm(1,n))
                    if not MR:
                        g("s_waitcnt lgkmcnt(0)"); g(f"v_max3_u32 v{vTmp}, v{vTmp}, v{vM+16}, v{vM+18}")
                    g(f"v_cmp_eq_u32 vcc, -1, v{vTmp}")
                    lc=g.uniq("mc")
                    g(f"s_cbranch_vccnz {lc}")
                    if MR: g("s_waitcnt lgkmcnt(0)")
                    def mcold(lc=lc,back=lm[0],mloads=mloads):
                        g.label(lc)
                        g("s_waitcnt lgkmcnt(0)")
                        lj_=g.uniq("mj")
                        for j in range(5):
                            ln=g.uniq("mn")
                            if j<4:
                                g(f"v_max_u32 v{vTmp}, v{vM+4*j}, v{vM+4*j+2}"); g(f"v_cmp_eq_u32 vcc, -1, v{vTmp}"); g(f"s_cbranch_vccz {ln}")
                            for x in mloads(j): g(x)
                            if j<4: g(f"s_branch {lj_}"); g.label(ln)
                        g.label(lj_)
                        timeout(g, back)
                    cold.append(mcold)
                elif MR:
                    for i in range(5):
                        g.label(lm[i])
                        g(f"s_waitcnt vmcnt({4-i})")
                        g(f"ds_write_b128 v{vAw}, {q4('v',vM+4*i)} offset:{L_MEM+1024*i}")
                        if MR==1 or i in (2,4):
                            lo=i if MR==1 else (0 if i==2 else 3)
                            R=[vM+4*n+h for n in range(lo,i+1) for h in (0,2)]
                            g(f"v_max_u32 v{vTmp}, v{R[0]}, v{R[1]}")
                            for x in range(2,len(R),2): g(f"v_max3_u32 v{vTmp}, v{vTmp}, v{R[x]}, v{R[x+1]}")
                            g(f"v_cmp_eq_u32 vcc, -1, v{vTmp}")
                            retry(lm[lo], ["s_waitcnt lgkmcnt(0)"]+mloads(lo))
                            for n in range(lo,i+1):
                                if n<NE: g(pm(0,n)); g(pm(1,n))
                    g("s_waitcnt lgkmcnt(0)")
                else:
                    g("s_waitcnt vmcnt(4)")
                    g(f"ds_read_b128 {q4('v',vM)}, v{vAw} offset:{L_MEM}")
                    for i in range(1,5):
                        g.label(lm[i-1])
                        g(f"s_waitcnt vmcnt({4-i})")
                        g(f"ds_read_b128 {q4('v',vM+4*i)}, v{vAw} offset:{L_MEM+1024*i}")
                        g("s_waitcnt lgkmcnt(1)"); mchk(i-1)
                    g.label(lm[4])
                    g("s_waitcnt lgkmcnt(0)"); mchk(4)
                if diag: g(f"s_mov_b32 s12, s{sTO}")
                stamp("mem")
                g("s_barrier")
                rd=lambda k: f"ds_read_b128 {q4('v',vM+20+4*k)}, v{[vA1,vA2,vA3][k//5]} offset:{L_MEM+1024*(k%5)}"
                rem_loads=[f"buffer_load_dwordx4 {q4('v',vK+4*i)}, v{vRem}, {WS}, {EXs} offen offset:{1024*i} sc1" for i in range(2)]
                vm_loads=[f"buffer_load_dwordx4 {q4('v',vVM+4*i)}, v{vEXv}, {WS}, {EXs} offen offset:{1024*i} sc1" for i in range(2)]
                stamp("b1")
                if opt.get("sp",0):
                    NR0=opt.get("nr0",3); nxt=NR0
                    for k in range(NR0): g(rd(k))
                    for m in [pm(t,i) for i in range(NE,5) for t in range(2)]+[pm(2,i) for i in range(2)]:
                        g(m)
                        if nxt<opt.get("nr1",6): g(rd(nxt)); nxt+=1
                    for k in range(15):
                        if nxt<15 or k in (10,12): g(f"s_waitcnt lgkmcnt({nxt-1-k if nxt<15 else {10:3,12:0}[k]})")
                        elif k<10: g(f"s_waitcnt lgkmcnt({14-k})")
                        g(pm(0,5+k))
                        if nxt<15: g(rd(nxt)); nxt+=1
                        g(pm(1,5+k))
                        if k==11: g(f"buffer_store_dwordx2 v[{vSent}:{vSent+1}], v{vXw}, {WS}, s{sXC+s4y} offen sc1") if opt["sp"]==2 else None
                        if k==0 and opt["sp"]==1: g(f"buffer_store_dwordx2 v[{vSent}:{vSent+1}], v{vXw}, {WS}, s{sXC+s4y} offen sc1")
                else:
                    NR0=opt.get("nr0",6)
                    for k in range(NR0): g(rd(k))
                    nxt=NR0
                    for m in [pm(t,i) for i in range(NE,5) for t in range(2)]+[pm(2,i) for i in range(2)]:
                        g(m)
                        for _ in range(2):
                            if nxt<15: g(rd(nxt)); nxt+=1
                    while nxt<15: g(rd(nxt)); nxt+=1
                    if opt.get('xz_b1'): g(f"buffer_store_dwordx2 v[{vSent}:{vSent+1}], v{vXw}, {WS}, s{sXC+s4y} offen sc1")
                    rsl=[f"buffer_store_dwordx2 v[{vSent}:{vSent+1}], v{vRs}, {WS}, s{sMEM+s4z} offen{LS}",
                         f"buffer_store_dwordx4 {q4('v',vSent)}, v{vTst}, {WS}, s{sEX+s4y} offen{LS}",
                         f"buffer_store_dwordx2 v[{vSent}:{vSent+1}], v{vTst3}, {WS}, s{sEX+s4y} offen{LS}"] if opt.get("rs_b1") else []
                    WK=opt.get("wk",list(range(15)))
                    for k in range(15):
                        if k in WK:
                            nx=min([x for x in WK if x>k]+[15])
                            g(f"s_waitcnt lgkmcnt({15-nx})")
                        g(pm(0,5+k)); g(pm(1,5+k))
                        if rsl and k%2==1: g(rsl.pop(0))
            stamp("kdone")
            qat=opt.get("q_at",16); vat=opt.get("v_at",1)
            lds=[f"ds_read_b128 {q4('v',vQ+4*i)}, v{vL16} offset:{L_QK+1024*i}" for i in range(4)]
            lds+=[f"ds_read_b128 {q4('v',vKS+4*i)}, v{vKSa} offset:{L_KV+1024*i}" for i in range(8)]
            vsr=[f"ds_read_b128 {q4('a',aVS+4*i)}, v{vVSa} offset:{L_KV+16384+1024*i}" for i in range(4)]
            V2=opt.get("v2",0)
            for i in range(2,20):
                g(pm(2,i))
                if i<4 and not V2: g(vsr.pop(0)); g(vsr.pop(0))
                if i==(3 if V2 else 4):
                    if V2: g("s_nop 1")
                    for r in range(4): g(f"v_cvt_pk_bf16_f32 v{vAc+r}, v{vAc+2*r}, v{vAc+2*r+1}")
                    g(f"buffer_store_dwordx4 {q4('v',vAc)}, v{vTst}, {WS}, {EXs} offen{LS}")
                    g(f"ds_write_b128 v{vTst2}, {q4('v',vAc)} offset:{L_QK}")
                if V2 and 4<=i<8: g(vsr.pop(0))
                if i==7: g(f"s_waitcnt lgkmcnt({4 if V2 else 0})"); g("s_barrier")
                if i>=8: g(lds.pop(0))
                if i==qat:
                    for l in rem_loads: g(l)
            stamp("vdone")
            if qat>=20:
                dly("dly_q")
                for l in rem_loads: g(l)
                g("s_nop 4")
            else: g("s_nop 6")
            g(f"v_cvt_pk_bf16_f32 v{vAc+8}, v{vAc+8}, v{vAc+9}"); g(f"v_cvt_pk_bf16_f32 v{vAc+9}, v{vAc+10}, v{vAc+11}")
            g(f"buffer_store_dwordx2 v[{vAc+8}:{vAc+9}], v{vTst3}, {WS}, {EXs} offen{LS}")
            if U==(NSTEP-1)%4:
                g(f"s_cmp_eq_u32 s{sT}, {NSTEP-1}"); g(f"s_cbranch_scc1 L_{N}_last")
            stamp("pub2")
            def chk8(b,n=16):
                R=[b+i for i in range(0,n,2)]
                g(f"v_max_u32 v{vTmp}, v{R[0]}, v{R[1]}")
                for i in range(2,len(R),2): g(f"v_max3_u32 v{vTmp}, v{vTmp}, v{R[i]}, v{R[i+1]}")
                g(f"v_cmp_eq_u32 vcc, -1, v{vTmp}")
            t0,t1=vMx,vMx+1
            S2=opt.get("s2",0)
            def scores(Q,K,first,rem_loads=rem_loads,vm_loads=vm_loads):
                sa=[f"{MF} {q4('v',vS+4)}, {q4('v',vKS+4*j)}, {q4('v',Q+4*j)}, {'0' if j==0 else q4('v',vS+4)}" for j in range(4)]
                sb=[f"{MF} {q4('v',vS+8)}, {q4('v',vKS+16+4*j)}, {q4('v',Q+4*j)}, {'0' if j==0 else q4('v',vS+8)}" for j in range(4)]
                sm=[f"{MF} {q4('v',vS)}, {q4('v',K+4*j)}, {q4('v',Q+4*j)}, {q4('v',vBias) if j==0 else q4('v',vS)}" for j in range(4)]
                mv=[f"v_mov_b32_dpp v{vK+8+i}, v{vK+i} row_ror:8 row_mask:0xf bank_mask:0xf" for i in range(8)]
                g("s_waitcnt lgkmcnt(0)")
                if first:
                    for x in sa+sb: g(x)
                lp=g.uniq("pq")
                g("s_waitcnt vmcnt(1)")
                g.label(lp)
                g(f"v_max_u32 v{vTmp}, v{vK}, v{vK+4}"); g(f"v_cmp_eq_u32 vcc, -1, v{vTmp}")
                retry(lp, rem_loads+["s_waitcnt vmcnt(0)"])
                stamp("qok")
                if first:
                    interleave(g, sm[:2], mv, per=4); g("s_nop 0")
                    interleave(g, sm[2:], vm_loads if S2 else [], per=1)
                else:
                    interleave(g, [sa[0],sb[0],sa[1],sb[1],sm[0],sm[1]], mv, per=2)
                    interleave(g, [sa[2],sb[2],sa[3],sb[3],sm[2],sm[3]], vm_loads if S2 else [], per=1, start=2)
            l0=g.uniq("p0"); l1=g.uniq("p1")
            g(f"s_cmp_eq_u32 s{sP}, 0"); g(f"s_cbranch_scc1 {l0}")
            scores(vK,vQ,False)
            g.label(l1)
            def p0(l0=l0,l1=l1,scores=scores):
                g.label(l0); scores(vQ,vK,True); g(f"s_branch {l1}")
            cold.append(p0)
            if diag: g(f"s_mov_b32 s13, s{sTO}")
            stamp("kok")
            if not S2:
                for l in vm_loads: g(l)
            g("s_nop 1")
            g(f"v_max3_f32 v{t0}, v{vS+4}, v{vS+5}, v{vS+6}")
            g(f"v_max3_f32 v{t0}, v{t0}, v{vS+7}, v{vS+8}")
            g(f"v_max3_f32 v{t0}, v{t0}, v{vS+9}, v{vS+10}")
            g(f"v_max_f32 v{t0}, v{t0}, v{vS+11}")
            if S2: g("s_nop 1")
            g(f"v_max3_f32 v{t0}, v{t0}, v{vS}, v{vS+1}")
            g(f"v_max3_f32 v{t0}, v{t0}, v{vS+2}, v{vS+3}")
            g(f"v_mov_b32 v{t1}, v{t0}"); g("s_nop 1")
            g(f"v_permlane16_swap_b32 v{t0}, v{t1}"); g(f"v_max_f32 v{t0}, v{t0}, v{t1}")
            g(f"v_mov_b32 v{t1}, v{t0}"); g("s_nop 1")
            g(f"v_permlane32_swap_b32 v{t0}, v{t1}"); g(f"v_max_f32 v{t0}, v{t0}, v{t1}")
            g(f"v_mul_f32 v{t0}, s{sC1}, v{t0}")
            for i in range(4,12): g(f"v_fma_f32 v{vS+i}, v{vS+i}, s{sC1}, -v{t0}")
            for i in range(4,12): g(f"v_exp_f32 v{vS+i}, v{vS+i}")
            g(f"v_fma_f32 v{vS}, v{vS}, s{sC1}, -v{t0}")
            for i in range(4): g(f"v_cvt_pk_bf16_f32 v{vP+i}, v{vS+4+2*i}, v{vS+5+2*i}")
            for i in range(1,3): g(f"v_fma_f32 v{vS+i}, v{vS+i}, s{sC1}, -v{t0}")
            Ps=q4('v',vP); Pm_lo=q4('v',vPm+2); Pm_hi=q4('v',vPm)
            g(f"{MF} {q4('v',vLs)}, {q4('v',vOne)}, {Ps}, 0")
            g(f"v_fma_f32 v{vS+3}, v{vS+3}, s{sC1}, -v{t0}")
            if S2==2:
                ck=[f"v_max_u32 v{vTmp}, v{vVM}, v{vVM+2}", f"v_max3_u32 v{vTmp}, v{vTmp}, v{vVM+4}, v{vVM+6}", f"v_cmp_eq_u32 vcc, -1, v{vTmp}"]
                for i in range(4):
                    g(f"{MF} {q4('v',vO+4*i)}, {q4('a',aVS+4*i)}, {Ps}, 0")
                    g(f"v_exp_f32 v{vS+i}, v{vS+i}")
                g("s_waitcnt vmcnt(0)")
                for x in ck: g(x)
                g(f"v_cvt_pk_bf16_f32 v{vPm+2}, v{vS}, v{vS+1}")
                g(f"v_cvt_pk_bf16_f32 v{vPm+3}, v{vS+2}, v{vS+3}")
                lp=g.uniq("pv"); g.label(lp)
                retry(lp, vm_loads+["s_waitcnt vmcnt(0)"]+ck)
                g("s_nop 0")
                g(f"{MF} {q4('v',vLs)}, {q4('v',vOne)}, {Pm_lo}, {q4('v',vLs)}")
            else:
                for i in range(4):
                    g(f"{MF} {q4('v',vO+4*i)}, {q4('a',aVS+4*i)}, {Ps}, 0")
                    g(f"v_exp_f32 v{vS+i}, v{vS+i}")
                g(f"v_cvt_pk_bf16_f32 v{vPm+2}, v{vS}, v{vS+1}")
                g(f"v_cvt_pk_bf16_f32 v{vPm+3}, v{vS+2}, v{vS+3}")
                stamp("vwait")
                lp=g.uniq("pv")
                g("s_waitcnt vmcnt(0)")
                if S2: g("s_nop 0"); g(f"{MF} {q4('v',vLs)}, {q4('v',vOne)}, {Pm_lo}, {q4('v',vLs)}")
                g.label(lp)
                chk8(vVM,8)
                retry(lp, vm_loads+["s_waitcnt vmcnt(0)"])
            stamp("vok")
            if not S2: g(f"{MF} {q4('v',vLs)}, {q4('v',vOne)}, {Pm_lo}, {q4('v',vLs)}")
            for i in range(4):
                g(f"{MF} {q4('v',vO+4*i)}, {q4('v',vVM+4*(i//2))}, {Pm_lo if i%2==0 else Pm_hi}, {q4('v',vO+4*i)}")
                if i==1 and S2==1: g(f"v_rcp_f32 v{vLs}, v{vLs}")
                if i==0 and not opt.get('xz_b1'): g(f"buffer_store_dwordx2 v[{vSent}:{vSent+1}], v{vXw}, {WS}, s{sXC+s4y} offen sc1")
            if DIR: c2poll()
            if S2!=1: g(f"v_rcp_f32 v{vLs}, v{vLs}")
            else: g("s_nop 0")
            if diag: g(f"s_mov_b32 s14, s{sTO}")
            g(f"s_mov_b64 exec, s[{mOwn}:{mOwn+1}]")
            for i in range(4):
                g(f"v_pk_mul_f32 v[{vO+4*i}:{vO+4*i+1}], v[{vO+4*i}:{vO+4*i+1}], v[{vLs}:{vLs+1}] op_sel_hi:[1,0]")
                g(f"v_pk_mul_f32 v[{vO+4*i+2}:{vO+4*i+3}], v[{vO+4*i+2}:{vO+4*i+3}], v[{vLs}:{vLs+1}] op_sel_hi:[1,0]")
                g(f"v_cvt_pk_bf16_f32 v{vS+2*i}, v{vO+4*i}, v{vO+4*i+1}")
                g(f"v_cvt_pk_bf16_f32 v{vS+2*i+1}, v{vO+4*i+2}, v{vO+4*i+3}")
                if i%2==1: g(f"ds_write_b128 v{vOa}, {q4('v',vS+4*(i//2))} offset:{L_O+1024*(i//2)}")
            g("s_mov_b64 exec, -1")
            stamp("ow")
            g("s_waitcnt lgkmcnt(0)")
            g("s_barrier")
            for j in range(4): g(f"ds_read_b128 {q4('v',vOf+4*j)}, v{vL16} offset:{L_O+1024*j}")
            stamp("ostg")
            def wo(bi,j,tq):
                d=vW+8*bi+4*tq; a=vWo+32*bi+8*j+4*tq if bi<2 else vWo+64+4*j
                return f"{MF} {q4('v',d)}, {q4('v',a)}, {q4('v',vOf+4*j)}, {'0' if j==0 else q4('v',d)}"
            tag=(lambda r: f"v_or_b32 v{r}, 1, v{r}") if ph else (lambda r: f"v_and_b32 v{r}, -2, v{r}")
            def wout(bi):
                d=vW+8*bi
                c=[f"v_cvt_pk_bf16_f32 v{d+r}, v{d+2*r}, v{d+2*r+1}" for r in range(4)]
                if bi<2:
                    return [c[0],c[1],tag(d),c[2],c[3],tag(d+2),f"buffer_store_dwordx4 {q4('v',d)}, v{vPCw}, {WS}, s{sPC+s2} offen offset:{1024*bi}{LS}"]
                return [c[0],c[1],tag(d),f"buffer_store_dwordx2 v[{d}:{d+1}], v{vPCh}, {WS}, s{sPC+s2} offen{LS}"]
            if opt.get("wo2",1)==3:
                for j in range(4):
                    g(f"s_waitcnt lgkmcnt({3-j})")
                    g(wo(0,j,0)); g(wo(0,j,1))
                w0=wout(0); w1=wout(1)
                M=[wo(2,j,0) for j in range(4)]+[wo(1,j,0) for j in range(4)]
                interleave(g, M, w0, per=3, start=2)
                interleave(g, [wo(1,j,1) for j in range(4)], wout(2), per=2, start=0)
                for x in w1[:3]: g(x)
                g("s_nop 4")
                for x in w1[3:]: g(x)
            elif opt.get("wo2",1)==2:
                for j in range(4):
                    g(f"s_waitcnt lgkmcnt({3-j})")
                    g(wo(0,j,0)); g(wo(0,j,1))
                for j in range(4): g(wo(2,j,0))
                w1=wout(1)
                interleave(g, [wo(1,j,0) for j in range(4)], wout(0), per=2, start=0)
                interleave(g, [wo(1,j,1) for j in range(4)], wout(2), per=2, start=0)
                for x in w1[:3]: g(x)
                g("s_nop 4")
                for x in w1[3:]: g(x)
            elif opt.get("wo2",1):
                for j in range(4):
                    g(f"s_waitcnt lgkmcnt({3-j})")
                    g(wo(2,j,0)); g(wo(0,j,0)); g(wo(0,j,1))
                w1=wout(1)
                interleave(g, [wo(1,j,0) for j in range(4)], wout(2), per=2, start=2)
                interleave(g, [wo(1,j,1) for j in range(4)], wout(0), per=2, start=0)
                for x in w1[:3]: g(x)
                g("s_nop 3")
                for x in w1[3:]: g(x)
            else:
                for j in range(4):
                    g(f"s_waitcnt lgkmcnt({3-j})")
                    g(wo(0,j,0)); g(wo(0,j,1))
                interleave(g, [wo(1,j,tq) for j in range(4) for tq in range(2)], wout(0), per=2, start=4)
                for j in range(4): g(wo(2,j,0))
                for x in wout(1): g(x)
                g("s_nop 0")
                for x in wout(2): g(x)
            stamp("wo")
            if U==0:
                lpa=g.uniq("pa"); lpb=g.uniq("pab")
                g(f"s_cmp_eq_i32 s{sPAR}, -1"); g(f"s_cbranch_scc1 {lpa}")
                g.label(lpb)
                def getpar(lpa=lpa,lpb=lpb):
                    g.label(lpa); pre.wait_bar(g,*pre.BA,vRD,par=True); xcbases(); g(f"s_branch {lpb}")
                cold.append(getpar)
            def resets(s4y=s4y):
                if opt.get("no_rs"): return
                g(f"buffer_store_dwordx4 {q4('v',vSent)}, v{vTst}, {WS}, s{sEX+s4y} offen{LS}")
                g(f"buffer_store_dwordx2 v[{vSent}:{vSent+1}], v{vTst3}, {WS}, s{sEX+s4y} offen{LS}")
            lnr=g.uniq("nr"); lj=g.uniq("rj")
            g(f"s_cmp_eq_u32 s{sRed}, 0"); g(f"s_cbranch_scc1 {lnr}")
            if opt.get("rs_pc"):
                g(f"buffer_store_dwordx2 v[{vSent}:{vSent+1}], v{vRs}, {WS}, s{sMEM+s4z} offen{LS}")
                resets()
            if TP:
                lq=g.uniq("tp")
                g(f"s_cmp_lg_u32 s{sP}, 0"); g(f"s_cbranch_scc1 {lq}")
                dly("dly_pc")
                g.label(lq)
                dly("dly_pca")
            else: dly("dly_pc")
            stamp("pcld")
            lp=g.uniq("pp")
            g.label(lp)
            for i in range(4): g(f"buffer_load_dwordx4 {q4('v',vRD+4*i)}, v{vRl+(i>>1)}, {WS}, s{sPC+s2} offen offset:{256*(i&1)} sc1")
            for i in range(4):
                g(f"s_waitcnt vmcnt({3-i})")
                d = vAc+4*(i&1)
                g(f"{MF} {q4('v',d)}, {q4('v',vSel)}, {q4('v',vRD+4*i)}, {'0' if i<2 else q4('v',d)}")
                if i==0: g(f"{'v_and_b32' if ph else 'v_or_b32'} v{vTmp}, v{vRD}, v{vRD+2}")
                elif ph: g(f"v_bitop3_b32 v{vTmp}, v{vTmp}, v{vRD+4*i}, v{vRD+4*i+2} bitop3:0x80")
                else: g(f"v_or3_b32 v{vTmp}, v{vTmp}, v{vRD+4*i}, v{vRD+4*i+2}")
            g(f"v_and_b32 v{vTmp}, 1, v{vTmp}")
            g(f"v_cmp_ne_u32 vcc, {ph}, v{vTmp}")
            retry(lp)
            if diag: g(f"s_mov_b32 s15, s{sTO}")
            stamp("red")
            g("s_barrier")
            stamp("bx")
            g("s_mov_b32 exec_lo, 0")
            g("s_nop 1")
            for r in range(4): g(f"v_mov_b32 v{vAc+r}, v{vAc+4+r}")
            g("s_mov_b32 exec_lo, -1")
            XB=opt.get("xbf",0)
            if XB:
                g(f"v_cvt_pk_bf16_f32 v{vAc+8}, v{vAc}, v{vAc+1}"); g(f"v_cvt_pk_bf16_f32 v{vAc+9}, v{vAc+2}, v{vAc+3}")
                for vv in [vXw]: g(f"buffer_store_dwordx2 v[{vAc+8}:{vAc+9}], v{vv}, {WS}, s{sXC+s4} offen sc1")
                for r in range(2):
                    g(f"v_lshlrev_b32 v{vAc+2*r}, 16, v{vAc+8+r}"); g(f"v_and_b32 v{vAc+2*r+1}, 0xffff0000, v{vAc+8+r}")
            else: g(f"buffer_store_dwordx4 {q4('v',vAc)}, v{vXw}, {WS}, s{sXC+s4} offen sc1")
            RB=opt.get("rs_b1",0)
            if not opt.get("rs_pc") and not RB:
                g(f"buffer_store_dwordx2 v[{vSent}:{vSent+1}], v{vRs}, {WS}, s{sMEM+s4z} offen{LS}")
                resets()
            dly("dly_xc")
            stamp("xcld")
            lp=g.uniq("px")
            g.label(lp)
            if XB:
                XA=opt.get("xat",0)
                xat=[f"v_mov_b32 v{vXR+i}, 0" for i in range(6)]+[f"buffer_atomic_or_x2 v[{vXR+2*k}:{vXR+2*k+1}], v{vXr[k]}, {WS}, s{sXC+s4} offen sc0" for k in range(3)]
                if XA==2:
                    for x in xat: g(x)
                else:
                    for k in range(3): g(f"buffer_load_dwordx2 v[{vXR+2*k}:{vXR+2*k+1}], v{vXr[k]}, {WS}, s{sXC+s4} offen sc1")
                lp2=g.uniq("px2"); g.label(lp2)
                for k in range(3):
                    g(f"s_waitcnt vmcnt({2-k})")
                    if k==0: stamp("xc1")
                    if k==2: stamp("xc3")
                    if k==2:
                        g(f"v_max3_u32 v{vTmp}, v{vXR}, v{vXR+2}, v{vXR+4}"); g(f"v_cmp_eq_u32 vcc, -1, v{vTmp}")
                    for r in range(2):
                        g(f"v_lshlrev_b32 v{vXR+8+2*r}, 16, v{vXR+2*k+r}"); g(f"v_and_b32 v{vXR+9+2*r}, 0xffff0000, v{vXR+2*k+r}")
                    src=vAc if k==0 else vAc+4
                    g(f"v_pk_add_f32 v[{vAc+4}:{vAc+5}], v[{src}:{src+1}], v[{vXR+8}:{vXR+9}]")
                    g(f"v_pk_add_f32 v[{vAc+6}:{vAc+7}], v[{src+2}:{src+3}], v[{vXR+10}:{vXR+11}]")
            else:
                for k in range(3): g(f"buffer_load_dwordx4 {q4('v',vXR+4*k)}, v{vXr[k]}, {WS}, s{sXC+s4} offen sc1")
                g("s_waitcnt vmcnt(1)")
                g(f"v_pk_add_f32 v[{vAc+4}:{vAc+5}], v[{vAc}:{vAc+1}], v[{vXR}:{vXR+1}]")
                g(f"v_pk_add_f32 v[{vAc+6}:{vAc+7}], v[{vAc+2}:{vAc+3}], v[{vXR+2}:{vXR+3}]")
                g(f"v_pk_add_f32 v[{vAc+4}:{vAc+5}], v[{vAc+4}:{vAc+5}], v[{vXR+4}:{vXR+5}]")
                g(f"v_pk_add_f32 v[{vAc+6}:{vAc+7}], v[{vAc+6}:{vAc+7}], v[{vXR+6}:{vXR+7}]")
                g("s_waitcnt vmcnt(0)")
                g(f"v_max3_u32 v{vTmp}, v{vXR}, v{vXR+4}, v{vXR+8}")
                g(f"v_cmp_eq_u32 vcc, -1, v{vTmp}")
                g(f"v_pk_add_f32 v[{vAc+4}:{vAc+5}], v[{vAc+4}:{vAc+5}], v[{vXR+8}:{vXR+9}]")
                g(f"v_pk_add_f32 v[{vAc+6}:{vAc+7}], v[{vAc+6}:{vAc+7}], v[{vXR+10}:{vXR+11}]")
            if XB and XA==1: retry(lp2, xat)
            else: retry(lp)
            g(f"v_cvt_pk_bf16_f32 v{vAc+4}, v{vAc+4}, v{vAc+5}")
            g(f"v_cvt_pk_bf16_f32 v{vAc+5}, v{vAc+6}, v{vAc+7}")
            if U<LAG or LAG>4:
                lo=g.uniq("ov"); lob=g.uniq("ovb")
                g(f"s_cmp_lt_u32 s{sT}, {LAG}"); g(f"s_cbranch_scc1 {lo}")
                g.label(lob)
                def ov(lo=lo,lob=lob):
                    g.label(lo)
                    g(f"s_mov_b32 exec_lo, 0xff00ff00"); g(f"s_mov_b32 exec_hi, 0xff00ff00")
                    g(f"v_mov_b32 v{vAc+4}, v{vM0}"); g(f"v_mov_b32 v{vAc+5}, v{vM0+1}")
                    g("s_mov_b64 exec, -1")
                    g(f"s_branch {lob}")
                cold.append(ov)
            g(f"buffer_store_dwordx2 v[{vAc+4}:{vAc+5}], v{vRs}, {WS}, s{sMEM+s4n} offen{LS}")
            g.label(lj)
            def nonred(lnr=lnr,lj=lj,resets=resets):
                g.label(lnr)
                if diag:
                    g(f"s_mov_b32 s15, s{sTO}"); stamp("red"); stamp("bx"); stamp("xcld"); stamp("pcld"); stamp("xc1"); stamp("xc3")
                loader(None,0)
                g("s_barrier")
                if not opt.get("rs_b1"): resets()
                dly("dly_kv")
                li=g.uniq("id")
                g(f"s_cmp_lg_u32 s{sW}, 0"); g(f"s_cbranch_scc1 {li}")
                if DIR:
                    lw=g.uniq("dw"); ld=g.uniq("dd")
                    g.label(lw)
                    g(f"v_readfirstlane_b32 s3, v{vC2}"); g("s_nop 3"); g("s_cmp_lt_u32 s3, 12"); g(f"s_cbranch_scc1 {ld}")
                    g("s_mov_b32 s3, 0"); g(f"v_writelane_b32 v{vNeed}, s3, 1")
                    g.label(ld)
                    lf=g.uniq("df")
                    g(f"v_cmp_gt_u32 vcc, v{vNeed}, v{vTmp}"); g(f"s_cbranch_vccz {lf}")
                    c2poll()
                    g(f"buffer_load_dword v{vTmp}, v{vFl}, {WS}, 0 offen sc1"); g("s_waitcnt vmcnt(0)")
                    timeout(g, lw)
                    g.label(lf)
                    g(f"s_add_u32 s{sC2}, s{sC2}, 4")
                else: flagwait()
                kvdma(0,opt.get("kv_end",32),opt.get("kv_gap2",6))
                dly("dly_w0")
                g(f"s_branch {lj}")
                g.label(li)
                dly("dly_idle")
                g(f"s_branch {lj}")
            cold.append(nonred)
            stamp("xc")
            if diag:
                g("s_waitcnt lgkmcnt(0)")
                g(f"s_lshl_b32 s3, s{sT}, 6"); g(f"s_mul_i32 s{sA}, s{sW}, 8192"); g(f"s_add_u32 s3, s3, s{sA}"); g(f"s_add_u32 s3, s3, 65536")
                g(f"v_mov_b32 v{vRD+8}, s12"); g(f"v_mov_b32 v{vRD+9}, s13"); g(f"v_mov_b32 v{vRD+10}, s14"); g(f"v_mov_b32 v{vRD+11}, s15"); g(f"v_mov_b32 v{vRD+13}, s{sTO}")
                for i in range(8): g(f"v_mov_b32 v{vRD+i}, s{ST+2*i}")
                g(f"v_mov_b32 v{vTmp}, s3")
                g("s_mov_b64 exec, 1")
                for i in range(4): g(f"ds_write_b128 v{vTmp}, {q4('v',vRD+4*i)} offset:{16*i}")
                g("s_mov_b64 exec, -1")
                g("s_waitcnt lgkmcnt(0)")
            g(f"s_add_u32 s{sT}, s{sT}, 1")
            if not opt.get("nofb"): g("s_barrier")
        g(f"s_branch L_{N}_loop{LN}")
        while cold: cold.pop(0)()
    g.amf=(opt.get("amf")==2)
    g.label(f"L_{N}_last")
    if opt.get("ldiag"):
        g("s_sub_u32 s85, s84, s92"); g(f"v_mov_b32 v{vRD+4}, s85")
        g("s_sub_u32 s84, s88, s84"); g("s_sub_u32 s86, s90, s86")
        g(f"v_mov_b32 v{vRD}, s84"); g(f"v_mov_b32 v{vRD+1}, s86")
        g(f"s_lshl_b32 s3, s{sH}, 3"); g(f"s_add_u32 s3, s3, {DBG3+32768}")
        g("s_mov_b64 exec, 1")
        g(f"buffer_store_dwordx2 v[{vRD}:{vRD+1}], off, {WS}, s3")
        g(f"buffer_store_dword v{vRD+4}, off, {WS}, s3 offset:256")
        if opt.get("ldiag")==2:
            pre.dbsrd(g)
            g("s_memrealtime s[84:85]"); g("s_waitcnt lgkmcnt(0)"); g("s_sub_u32 s84, s84, s92"); g("s_sub_u32 s94, s94, s92")
            g(f"v_mov_b32 v{vRD+2}, s84"); g(f"v_mov_b32 v{vRD+3}, s94")
            g(f"buffer_store_dwordx4 {q4('v',vRD)}, off, {pre.DB}, 0 offset:40")
        g("s_mov_b64 exec, -1")
    if diag:
        g("s_waitcnt lgkmcnt(0)")
        g(f"s_mul_i32 s{sA}, s{sW}, 8192"); g(f"s_add_u32 s{sA}, s{sA}, 65536")
        g(f"v_add_u32 v{vTmp}, s{sA}, v{vL16}")
        g(f"s_lshl_b32 s3, s{sH}, 3"); g(f"s_add_u32 s3, s3, s{sW}"); g(f"s_lshl_b32 s{sA}, s{sP}, 2"); g(f"s_add_u32 s3, s3, s{sA}"); g(f"s_mul_i32 s3, s3, 5120"); g(f"s_add_u32 s3, s3, {DBG}")
        for i in range(5):
            g(f"ds_read_b128 {q4('v',vRD)}, v{vTmp} offset:{1024*i}")
            g("s_waitcnt lgkmcnt(0)")
            g(f"buffer_store_dwordx4 {q4('v',vRD)}, v{vL16}, {WS}, s3 offen")
            g(f"s_add_u32 s3, s3, 1024")
            g("s_waitcnt vmcnt(0)")
    g("s_endpgm")
```

```python
import os
S=2048; D=640; H=32; DH=128; NSEG=64; M=8
LAG=int(os.environ.get('LAG','5'))
NSTEP=NSEG+LAG
AHEAD=(LAG+2)//2*2
NX=int(os.environ.get("NX","4"))
HX=32//NX
WS_BYTES=268435456
def al(x,a=4096): return (x+a-1)//a*a
_o=0
def alloc(n):
    global _o
    r=_o; _o=al(_o+n); return r
FLW    = alloc(32*128)
CQKV   = alloc(32*256)
_o=al(_o,16384)
CQKV1  = alloc(2*32*256)
CO     = alloc(3*16384)
CPBS=2*32*512; CXNS=2*96*256
CPB    = alloc(4*CPBS)
CXN    = alloc(4*CXNS)
PC     = alloc(2*32*20480)
ZERO_END=_o
MEM    = alloc(4*4*20480)
EX     = alloc(4*32*12288)
SENT_END=_o
_o=al(_o,1<<21)
XCS=49152
XC     = alloc(4<<21)
_o=al(_o,16384)
PROBE  = alloc(8*16384)
_o=al(_o,1<<22)
KQ     = alloc(2*64*32*16384)
VO     = alloc(2*64*32*16384)
LST    = 64*32*16384
PB     = alloc(2*64*8*81920)
XN     = alloc(2*64*40960)
KVT    = alloc(640*4096)
YT     = alloc(32*81920)
DBG    = alloc(2<<20)
DBG2   = alloc(1024*80*32)
DBG3   = alloc(65536)
assert _o<=WS_BYTES, _o
OOB = WS_BYTES
CLEARS=[(0,ZERO_END,0),(ZERO_END,SENT_END,-1)]+[(XC+(s<<21),XC+(s<<21)+4*XCS,-1) for s in range(4)]
```

```python
from asmlib import *
from layout import *
import chain as ch
import bulk as bk
from chain import WS,WT,MF,q4,sX,sTK,sW,sTO,sPAR,timeout
W2="s[12:15]"; DB="s[96:99]"
sHI,sRole=82,83
CH_LDS=13312
KVO,EO,OO=0,4608,4608+4160
NH=88; NHW=4*NH
BA,BB,BY1,BC1,BC2,BY2=(4,88),(68,40),(8,160),(72,8),(12,64),(76,160)
BB2=(80,40)
ROW1,ROW2=352,544
def dbsrd(g): srd(g, 96, 44, 256)

def arrive_w(g, bar, v):
    off,n=bar
    dbsrd(g)
    l=g.uniq("aw")
    g(f"v_mov_b32 v{v}, 1"); g("s_mov_b64 exec, 1")
    g(f"buffer_atomic_add v{v}, off, {DB}, 0 offset:{off} sc0")
    g("s_waitcnt vmcnt(0)")
    g(f"v_cmp_eq_u32 vcc, {n-1}, v{v}"); g(f"s_cbranch_vccz {l}")
    g(f"buffer_store_dword v{v}, off, {DB}, 0 offset:{off+128} sc1")
    g.label(l)
    g("s_mov_b64 exec, -1")

def arrive(g, bar):
    g("s_waitcnt vmcnt(0)"); g("s_barrier")
    l=g.uniq("ar")
    g(f"s_cmp_lg_u32 s{sW}, 3"); g(f"s_cbranch_scc1 {l}")
    arrive_w(g,bar,1)
    g.label(l)

def wait_bar(g, off, n, v, par=False):
    dbsrd(g)
    g(f"v_mov_b32 v{v}, {off+128}")
    if par: g("s_mov_b32 s3, 144"); g(f"v_writelane_b32 v{v}, s3, 1")
    lp=g.uniq("wb"); ld=g.uniq("wbd")
    g(f"s_mov_b32 s{sTO}, 0"); g(f"s_mov_b64 exec, {3 if par else 1}")
    g.label(lp)
    g(f"buffer_load_dword v{v+1}, v{v}, {DB}, 0 offen sc1")
    g("s_waitcnt vmcnt(0)")
    g(f"v_cmp_eq_u32 vcc, 0, v{v+1}")
    g(f"s_cbranch_vccz {ld}")
    g("s_sleep 2")
    timeout(g, lp)
    g.label(ld)
    g("s_mov_b64 exec, -1")
    if par:
        g(f"v_readlane_b32 s{sPAR}, v{v+1}, 1"); g("s_nop 3"); g(f"s_sub_u32 s{sPAR}, s{sPAR}, 1")

def wait_wg(g, off, n, v, par=False):
    l=g.uniq("ww")
    g(f"s_cmp_lg_u32 s{sW}, 0"); g(f"s_cbranch_scc1 {l}")
    wait_bar(g,off,n,v,par)
    g.label(l)
    g("s_barrier")
    if par: wait_bar(g,off,n,v,par)

def probe(g):
    g("s_mov_b32 s64, 0xffff"); g("s_mov_b32 s65, 0xffff"); g("s_mov_b32 s62, 0")
    g("s_getreg_b32 s70, hwreg(HW_REG_XCC_ID, 2, 1)"); g("s_lshl_b32 s70, s70, 13")
    g("v_lshlrev_b32 v1, 8, v0"); g("v_mov_b32 v2, 0")
    dbsrd(g)
    g.label("L_probe0")
    g(f"s_sub_u32 s61, s{sHI}, 80"); g("s_lshl_b32 s61, s61, 14"); g(f"s_add_u32 s61, s61, {PROBE}"); g("s_add_u32 s63, s61, 8192")
    g("s_mov_b64 exec, -1")
    g(f"buffer_store_dword v2, v1, {WS}, s61 offen sc1")
    g("s_waitcnt vmcnt(0)")
    g("s_mov_b64 exec, 1")
    g.label("L_probe")
    for half in range(2):
        g(f"s_add_u32 s60, s61, {half*8192}"); g("s_xor_b32 s60, s60, s70")
        g("s_memtime s[66:67]"); g("s_waitcnt lgkmcnt(0)")
        g(f"buffer_load_dword v3, off, {WS}, s60 sc1")
        g("s_waitcnt vmcnt(0)")
        g("s_memtime s[68:69]"); g("s_waitcnt lgkmcnt(0)")
        g("s_sub_u32 s68, s68, s66"); g(f"s_min_u32 s{64+half}, s{64+half}, s68")
    g("s_add_u32 s61, s61, 2048")
    g("s_cmp_lt_u32 s61, s63"); g("s_cbranch_scc1 L_probe")
    g("s_cmp_lg_u32 s62, 0"); g("s_cbranch_scc1 L_probe_dec")
    g("s_sub_u32 s66, 0x10000, s64"); g("s_sub_u32 s67, 0x10000, s65")
    g("v_mov_b32 v4, s66"); g("v_mov_b32 v5, s67"); g("v_mov_b32 v3, 1")
    g(f"buffer_atomic_umax v4, off, {DB}, 0 offset:24"); g(f"buffer_atomic_umax v5, off, {DB}, 0 offset:28")
    g("s_waitcnt vmcnt(0)")
    g(f"buffer_atomic_add v3, off, {DB}, 0 offset:16 sc0")
    g("s_waitcnt vmcnt(0)")
    g("v_cmp_eq_u32 vcc, 7, v3"); g("s_cbranch_vccz L_probe_done")
    g(f"buffer_atomic_umax v4, off, {DB}, 0 offset:24 sc0"); g(f"buffer_atomic_umax v5, off, {DB}, 0 offset:28 sc0")
    g("s_waitcnt vmcnt(0)")
    g("v_readfirstlane_b32 s66, v4"); g("v_readfirstlane_b32 s67, v5"); g("s_nop 3")
    g("s_sub_u32 s64, 0x10000, s66"); g("s_sub_u32 s65, 0x10000, s67")
    g.label("L_probe_dec")
    g("s_add_u32 s62, s62, 1")
    g("s_absdiff_i32 s60, s64, s65")
    g("s_cmp_ge_u32 s62, 5"); g("s_cselect_b32 s60, 0xffff, s60")
    g("s_cmp_lt_u32 s60, 112"); g("s_cbranch_scc1 L_probe0")
    g("s_cmp_gt_u32 s64, s65"); g("s_cselect_b32 s60, 2, 1"); g("v_mov_b32 v3, s60")
    g(f"buffer_store_dword v3, off, {DB}, 0 offset:144 sc1")
    g("v_mov_b32 v4, s62"); g(f"buffer_store_dword v4, off, {DB}, 0 offset:60 sc1")
    g.label("L_probe_done")
    g("s_mov_b64 exec, -1")

sHW,sA,sB,sInv,sEps,sRow,sCh,sLB,sN=60,73,74,63,68,69,70,71,72
P=lambda r: f"v[{r}:{r+1}]"

def ln_rows(g, stride, end, between=None):
    srd(g, 8, 16, 2048*1280)
    g("v_lshlrev_b32 v1, 4, v0"); g("v_lshlrev_b32 v2, 3, v0")
    g("v_cmp_lt_u32 vcc, 31, v0"); g(f"v_mov_b32 v3, {OOB}"); g("s_nop 1"); g("v_cndmask_b32 v7, v2, v3, vcc")
    g(f"s_mov_b32 s{sInv}, {hex(ch.f32bits(1/640))}"); g(f"s_mov_b32 s{sEps}, {hex(ch.f32bits(1e-5))}")
    def rowload(add):
        g(f"s_add_u32 s3, s{sN}, {add}"); g("s_mul_i32 s3, s3, 1280")
        for i in range(3): g(f"buffer_load_dwordx2 v[{48+2*i}:{48+2*i+1}], v{2 if i<2 else 7}, {WT}, s3 offen offset:{512*i}")
    rowload(0)
    if between: between()
    else: g("s_waitcnt vmcnt(0)")
    l=g.uniq("ln")
    g.label(l)
    bk.unpack6(g,12,48)
    if not between: rowload(stride)
    g(f"s_and_b32 s3, s{sN}, 15")
    bk.xn_addr(g, 4, 9, 3)
    g("v_cndmask_b32 v8, v4, v3, vcc")
    bk.layernorm(g,12,36,10,11,9,sInv,sEps,packed=24)
    g(f"s_mul_i32 s3, s{sN}, 1280"); g(f"s_add_u32 s3, s3, {XN}")
    for i in range(3): g(f"buffer_store_dwordx2 v[{24+2*i}:{24+2*i+1}], v{4 if i<2 else 8}, {WS}, s3 offen offset:{512*i} sc1")
    if not between:
        g(f"s_add_u32 s{sN}, s{sN}, {stride}")
        g("s_waitcnt vmcnt(3)")
        g(f"s_cmp_lt_u32 s{sN}, {end}"); g(f"s_cbranch_scc1 {l}")

def conv_loads(g, hi, h=True, k=True):
    nK = 4 if hi else 2; vH=96; vKv = 240 if hi else vH+8
    if h:
        g(f"s_lshl_b32 s{sA}, s{sCh}, 12"); g(f"s_add_u32 s{sB}, s{sA}, 2")
        for i in range(nK): g(f"buffer_load_dwordx4 {q4('v',vH+4*i)}, v130, {WT}, s{sA} offen offset:{1024*i}")
        for i in range(nK): g(f"buffer_load_dwordx4 {q4('v',vH+16+4*i)}, v130, {WT}, s{sB} offen offset:{1024*i}")
        g(f"s_lshl_b32 s3, s{sCh}, 1")
        g(f"buffer_load_ushort v{vH+32}, off, {W2}, s3")
    if k:
        g(f"s_lshl_b32 s3, s{sCh}, 12"); g(f"s_add_u32 s3, s3, {KVT}")
        for i in range(nK): g(f"buffer_load_dwordx4 {q4('v',vKv+4*i)}, v130, {WS}, s3 offen offset:{1024*i} sc1")
def conv_pref(g, hi):
    srd(g, 8, 38, 640*4096); srd(g, 12, 40, 1280)
    g("v_lshlrev_b32 v130, 4, v0")
    conv_loads(g, hi, True, bool(hi))

def conv(g, hi, step, pre_wait=None):
    nK = 4 if hi else 2
    nX = 8 if hi else 4
    srd(g, 8, 38, 640*4096); srd(g, 12, 40, 1280)
    g("v_lshlrev_b32 v130, 4, v0")
    g(f"v_add_u32 v7, s{sLB}, v130")
    for i in range(4): g(f"v_mov_b32 v{8+i}, 0")
    g("s_mov_b32 exec_hi, 0"); g(f"ds_write_b128 v7, v[8:11] offset:{KVO}")
    g("s_mov_b32 exec_lo, 3"); g(f"ds_write_b128 v7, v[8:11] offset:{EO}"); g(f"ds_write_b128 v7, v[8:11] offset:{OO}")
    g("s_mov_b64 exec, -1")
    vAa,vBa,vKa,vYa,vDd=14,16,15,13,12
    vFA,vFB,vD,vH=32,64,144,96
    g("v_and_b32 v8, 15, v0"); g("v_lshrrev_b32 v9, 5, v0"); g("v_sub_u32 v10, v8, v9"); g("v_lshlrev_b32 v10, 5, v10")
    g("v_and_b32 v11, 16, v0"); g("v_add_u32 v10, v10, v11")
    g(f"s_add_u32 s3, s{sLB}, {KVO+512-32*14}"); g(f"v_add_u32 v{vAa}, s3, v10")
    g("v_lshlrev_b32 v10, 5, v9"); g("v_lshl_add_u32 v10, v8, 1, v10"); g("v_sub_u32 v10, v10, v11")
    g("v_and_b32 v11, 1, v0"); g("v_cmp_eq_u32 vcc, 1, v11")
    g(f"v_mov_b32 v12, {OO+16}"); g(f"v_mov_b32 v11, {EO+18}"); g("s_nop 0"); g("v_cndmask_b32 v11, v12, v11, vcc")
    g(f"v_add3_u32 v{vBa}, v10, v11, s{sLB}")
    for m in range(1,nX): g(f"v_add_u32 v{vBa+m}, {512*m}, v{vBa}")
    g("v_lshlrev_b32 v10, 5, v8"); g("v_lshl_add_u32 v10, v9, 4, v10"); g("v_and_b32 v11, 16, v0"); g("v_lshrrev_b32 v11, 1, v11"); g("v_xor_b32 v11, 8, v11")
    g(f"s_add_u32 s3, s{sLB}, {KVO+512}"); g(f"v_add3_u32 v{vKa}, v10, v11, s3")
    g("v_and_b32 v10, 1, v0"); g("v_lshlrev_b32 v10, 4, v10"); g("v_lshrrev_b32 v11, 4, v0"); g("v_lshl_add_u32 v10, v11, 2, v10")
    g("s_mov_b32 s3, 40960"); g(f"v_mul_lo_u32 v{vYa}, v10, s3"); g("v_lshrrev_b32 v11, 1, v8"); g(f"v_lshl_add_u32 v{vYa}, v11, 3, v{vYa}")
    vKv = 240 if hi else vH+8
    if pre_wait:
        pre_wait(); conv_loads(g,hi,False,True)
    g("s_waitcnt vmcnt(0)")
    lt=g.uniq("cv")
    g.label(lt)
    g("s_waitcnt vmcnt(4)")
    for i in range(nK):
        g(f"ds_write_b128 v7, {q4('v',vKv+4*i)} offset:{KVO+512+1024*i}")
        g(f"ds_write_b128 v7, {q4('v',vH+4*i)} offset:{EO+32+1024*i}")
        g(f"ds_write_b128 v7, {q4('v',vH+16+4*i)} offset:{OO+32+1024*i}")
    g(f"v_lshlrev_b32 v8, 16, v{vH}"); g(f"v_lshlrev_b32 v{vDd}, 16, v{vH+32}")
    g("s_mov_b64 exec, 1"); g(f"ds_write_b32 v7, v8 offset:{OO+28}"); g("s_mov_b64 exec, -1")
    g(f"s_lshl_b32 s{sN}, s{sCh}, 6"); g(f"s_add_u32 s{sN}, s{sN}, {YT+hi*32*40960}")
    g(f"s_add_u32 s{sCh}, s{sCh}, s{step}")
    g("s_waitcnt lgkmcnt(0)")
    conv_loads(g,hi)
    def loads(ci):
        c0=2*ci; o=144*(ci&1); L=[]
        for x in range(nX):
            L.append(f"ds_read_b128 {q4('v',vFA+o+4*x)}, v{vAa} offset:{32*(14-c0)+512*x}")
            L.append(f"ds_read2_b32 v[{vFB+o+4*x}:{vFB+o+4*x+1}], v{vBa+x} offset0:{8*c0} offset1:{8*c0+1}")
            L.append(f"ds_read2_b32 v[{vFB+o+4*x+2}:{vFB+o+4*x+3}], v{vBa+x} offset0:{8*c0+2} offset1:{8*c0+3}")
        return L
    for x in loads(0): g(x)
    for ci in range(8):
        o=144*(ci&1)
        g("s_waitcnt lgkmcnt(0)")
        mf=[]
        for m in range(nX):
            for d in range(nX-m):
                i=m+d
                if i<4*hi: continue
                mf.append(f"{MF} {q4('v',vD+4*(i&3))}, {q4('v',vFB+o+4*m)}, {q4('v',vFA+o+4*d)}, {'0' if (ci==0 and m==0) else q4('v',vD+4*(i&3))}")
        interleave(g, mf, loads(ci+1) if ci<7 else [f"ds_read_b64 v[{vFA+2*i}:{vFA+2*i+1}], v{vKa} offset:{512*(i+4*hi)}" for i in range(4)], per=1 if hi else 2)
    g("s_waitcnt lgkmcnt(0)")
    for i in range(4):
        b=vFB+4*i
        g(f"v_and_b32 v{b}, 0xffff0000, v{vFA+2*i+1}"); g(f"v_lshlrev_b32 v{b+1}, 16, v{vFA+2*i+1}")
        g(f"v_and_b32 v{b+2}, 0xffff0000, v{vFA+2*i}"); g(f"v_lshlrev_b32 v{b+3}, 16, v{vFA+2*i}")
        for r in range(4): g(f"v_mul_f32 v{b+r}, v{b+r}, v{vDd}")
    bk.rnd_pairs(g,[vFB+i for i in range(16)],8)
    bk.rnd_pairs(g,[vD+i for i in range(16)],8)
    for i in range(0,16,2): g(f"v_pk_add_f32 {P(vD+i)}, {P(vD+i)}, {P(vFB+i)}")
    for rr in range(4):
        for q in range(2): g(f"v_cvt_pk_bf16_f32 v{160+2*rr+q}, v{vD+8*q+rr}, v{vD+8*q+4+rr}")
        g(f"buffer_store_dwordx2 {P(160+2*rr)}, v{vYa}, {WS}, s{sN} offen sc1")
        g(f"s_add_u32 s{sN}, s{sN}, 40960")
    g(f"s_cmp_lt_u32 s{sCh}, 640"); g(f"s_cbranch_scc1 {lt}")

def helper(g):
    T=bk.TRACE[0]
    g.label("L_helper")
    l=g.uniq("np"); l2=g.uniq("np")
    g(f"s_and_b32 s3, s{sHI}, 0x78"); g("s_cmp_lg_u32 s3, 80"); g(f"s_cbranch_scc1 {l2}")
    g(f"s_cmp_lg_u32 s{sW}, 0"); g(f"s_cbranch_scc1 {l}")
    probe(g)
    tl(g,T,DBG3,sHI,2)
    g.label(l)
    g("s_barrier")
    g(f"s_lshl_b32 s{sN}, s{sHI}, 2"); g(f"s_add_u32 s{sN}, s{sN}, s{sW}"); g(f"s_add_u32 s{sN}, s{sN}, {ROW1-320}")
    ln_rows(g,32,ROW2)
    arrive(g,BC1)
    tl(g,T,DBG3,sHI,1)
    g("s_branch L_help_done")
    g.label(l2)
    g(f"s_lshl_b32 s{sHW}, s{sHI}, 2"); g(f"s_add_u32 s{sHW}, s{sHW}, s{sW}")
    g(f"s_sub_u32 s3, s{sHW}, 32"); g(f"s_cmp_ge_u32 s{sHW}, 320"); g(f"s_cselect_b32 s{sHW}, s3, s{sHW}")
    def clears():
        for (lo,hi,val) in CLEARS:
            l=g.uniq("cl"); le=g.uniq("cle")
            for i in range(4): g(f"v_mov_b32 v{12+i}, {val}")
            g(f"s_lshl_b32 s{sA}, s{sHW}, 10"); g(f"s_add_u32 s{sA}, s{sA}, {lo}")
            g.label(l)
            g(f"s_cmp_ge_u32 s{sA}, {hi}"); g(f"s_cbranch_scc1 {le}")
            g(f"buffer_store_dwordx4 v[12:15], v1, {WS}, s{sA} offen sc1")
            g(f"s_add_u32 s{sA}, s{sA}, {NHW*1024}")
            g(f"s_branch {l}")
            g.label(le)
            g("s_nop 1")
        g(f"s_waitcnt vmcnt({sum((hi-lo)//1024//NHW for lo,hi,_ in CLEARS)})")
    g(f"s_mov_b32 s{sN}, s{sHW}")
    ln_rows(g,0,0,clears)
    arrive(g,BA)
    tl(g,T,DBG3,sHI,0)
    g(f"s_cmp_eq_u32 s{sRole}, 3"); g("s_cbranch_scc1 L_help_done")
    if bk.OPT.get("wpf",0):
        l=g.uniq("wp")
        g(f"s_cmp_lg_u32 s{sRole}, 0"); g(f"s_cbranch_scc1 {l}")
        NPF=bk.OPT.get("wpf",0)*5
        g("v_lshrrev_b32 v90, 1, v0"); g("v_lshlrev_b32 v90, 13, v90"); g("v_and_b32 v91, 1, v0"); g("v_lshl_add_u32 v90, v91, 7, v90")
        srd(g, 8, 20, 640*8192)
        g(f"s_cmp_lt_u32 s{sW}, 2"); g("s_cselect_b32 s8, s20, s22"); g("s_cselect_b32 s9, s21, s23"); g("s_and_b32 s9, s9, 0xffff")
        g(f"s_and_b32 s3, s{sW}, 1"); g(f"s_mul_i32 s{sA}, s3, {NPF*32*8192}"); g(f"s_lshl_b32 s3, s{sHI}, 8"); g(f"s_add_u32 s{sA}, s{sA}, s3")
        for i in range(NPF):
            g(f"buffer_load_dword v{230+i}, v90, {WT}, s{sA} offen"); g(f"s_add_u32 s{sA}, s{sA}, {32*8192}")
        g.label(l)
    l=g.uniq("k2")
    g(f"s_sub_u32 s{sHW}, s{sHW}, 128")
    g(f"s_cmp_eq_u32 s{sRole}, 1"); g(f"s_cbranch_scc1 {l}")
    g(f"s_add_u32 s3, s{sHW}, 288"); g(f"s_add_u32 s{sHW}, s{sHW}, 128"); g(f"s_cmp_eq_u32 s{sRole}, 0"); g(f"s_cselect_b32 s{sHW}, s3, s{sHW}")
    if bk.OPT.get("kvdefer",0): wait_wg(g,*BB,24)
    g.label(l)
    vK,vV,vWt=100,144,176
    srd(g, 8, 32, 2048*1280); srd(g, 12, 34, 2048*1280)
    g(f"s_mul_i32 s{sA}, s{sHW}, 6554"); g(f"s_lshr_b32 s{sA}, s{sA}, 16"); g(f"s_mul_i32 s3, s{sA}, 10"); g(f"s_sub_u32 s{sB}, s{sHW}, s3")
    g(f"s_mul_i32 s{sRow}, s{sA}, {64*1280}"); g(f"s_lshl_b32 s3, s{sB}, 7"); g(f"s_add_u32 s{sRow}, s{sRow}, s3")
    g("v_lshrrev_b32 v90, 3, v0"); g("s_mov_b32 s3, 10240"); g("v_mul_lo_u32 v91, v90, s3"); g("v_and_b32 v92, 7, v0"); g("v_lshl_add_u32 v91, v92, 4, v91")
    g(f"v_add_u32 v91, s{sRow}, v91")
    g("v_subrev_u32 v93, 3840, v91"); g("v_cmp_gt_i32 vcc, 0, v93"); g("s_nop 1"); g("v_cndmask_b32 v93, v93, v3, vcc")
    for r in range(3): g(f"buffer_load_dwordx4 {q4('v',vK+4*r)}, v93, {WT}, 0 offen offset:{1280*r}")
    for r in range(8):
        g(f"s_mov_b32 s3, {1280*r}")
        g(f"buffer_load_dwordx4 {q4('v',vK+12+4*r)}, v91, {WT}, s3 offen")
        g(f"buffer_load_dwordx4 {q4('v',vV+4*r)}, v91, {W2}, s3 offen")
    srd(g, 8, 36, 640*8)
    g("v_lshlrev_b32 v93, 6, v92"); g(f"s_lshl_b32 s3, s{sB}, 9")
    for i in range(4): g(f"buffer_load_dwordx4 {q4('v',vWt+4*i)}, v93, {WT}, s3 offen offset:{16*i}")
    vU,vA,vP,vW,vO,vT=12,36,52,68,76,84
    g("v_lshlrev_b32 v94, 15, v92"); g("v_lshl_add_u32 v94, v90, 4, v94")
    g(f"s_lshl_b32 s{sCh}, s{sB}, 18"); g(f"s_lshl_b32 s3, s{sA}, 7"); g(f"s_add_u32 s{sCh}, s{sCh}, s3"); g(f"s_add_u32 s{sCh}, s{sCh}, {KVT}")
    g("s_waitcnt vmcnt(0)")
    tl(g,T,DBG3,sHI,7)
    def rnd(D):
        for r in range(8):
            g(f"v_cvt_pk_bf16_f32 v{vT}, v{D+2*r}, v{D+2*r+1}"); g(f"v_lshlrev_b32 v{D+2*r}, 16, v{vT}"); g(f"v_and_b32 v{D+2*r+1}, 0xffff0000, v{vT}")
    for c in range(4):
        for r in range(11):
            g(f"v_lshlrev_b32 v{vU+2*r}, 16, v{vK+4*r+c}"); g(f"v_and_b32 v{vU+2*r+1}, 0xffff0000, v{vK+4*r+c}")
        for j in range(4):
            for h in range(2):
                src=vWt+4*c+2*h+j//2
                g(f"v_lshlrev_b32 v{vW+2*j+h}, 16, v{src}" if j%2==0 else f"v_and_b32 v{vW+2*j+h}, 0xffff0000, v{src}")
        for j in range(4):
            D=vA if j==0 else vP
            for r in range(8): g(f"v_pk_mul_f32 {P(D+2*r)}, {P(vU+2*(r+j))}, {P(vW+2*(3-j))}")
            rnd(D)
            if j>0:
                for r in range(8): g(f"v_pk_add_f32 {P(vA+2*r)}, {P(vA+2*r)}, {P(vP+2*r)}")
                rnd(vA)
        for r in range(8):
            g(f"v_lshlrev_b32 v{vU+2*r}, 16, v{vV+4*r+c}"); g(f"v_and_b32 v{vU+2*r+1}, 0xffff0000, v{vV+4*r+c}")
        for r in range(8): g(f"v_pk_mul_f32 {P(vA+2*r)}, {P(vA+2*r)}, {P(vU+2*r)}")
        for h in range(2):
            for q in range(4): g(f"v_cvt_pk_bf16_f32 v{vO+4*h+q}, v{vA+2*(7-2*q)+h}, v{vA+2*(6-2*q)+h}")
            g(f"s_add_u32 s3, s{sCh}, {(2*c+h)*4096}")
            g(f"buffer_store_dwordx4 {q4('v',vO+4*h)}, v94, {WS}, s3 offen sc1")
    l=g.uniq("k3")
    g(f"s_cmp_eq_u32 s{sRole}, 1"); g(f"s_cbranch_scc1 {l}")
    arrive(g,BB2)
    tl(g,T,DBG3,sHI,1)
    g("s_branch L_help_conv")
    g.label(l)
    arrive(g,BB)
    tl(g,T,DBG3,sHI,1)
    bk.wo_weights(g,0); bk.wo_weights(g,1)
    g.label("L_help_conv")
    g(f"s_cmp_ge_u32 s{sHI}, 64"); g("s_cbranch_scc1 L_help_done")
    g(f"s_lshl_b32 s{sCh}, s{sHI}, 2"); g(f"s_add_u32 s{sCh}, s{sCh}, s{sW}"); g(f"s_add_u32 s{sCh}, s{sCh}, 384")
    g(f"s_mul_i32 s{sLB}, s{sW}, {CH_LDS}"); g(f"s_mov_b32 s{sRow}, 640")
    conv_pref(g,0)
    call(g,"L_conv0")
    arrive(g,BY1)
    tl(g,T,DBG3,sHI,3)
    g.label("L_help_done")
    wait_wg(g,*BA,1)
    g(f"s_cmp_eq_u32 s{sRole}, 0"); g("s_cbranch_scc1 L_t4")
    g(f"s_cmp_eq_u32 s{sRole}, 1"); g("s_cbranch_scc1 L_wo")
    g(f"s_cmp_eq_u32 s{sRole}, 2"); g("s_cbranch_scc1 L_att")
    g("s_branch L_wm")

def t4_late(g, sR):
    g(f"s_lshl_b32 s{sHW}, s{sR}, 1"); g(f"s_and_b32 s3, s{sW}, 1"); g(f"s_add_u32 s{sHW}, s{sHW}, s3")
    g(f"s_mul_i32 s{sLB}, s3, {CH_LDS}"); g(f"s_add_u32 s{sLB}, s{sLB}, {81920+49152}")
    g(f"s_add_u32 s{sN}, s{sHW}, {ROW2}")
    ln_rows(g,64,2048)
    g("s_waitcnt vmcnt(0)"); arrive_w(g,BC2,1)
    g(f"s_add_u32 s{sCh}, s{sHW}, 384"); g(f"s_mov_b32 s{sRow}, 64")
    wait_bar(g,*BB2,1)
    conv_pref(g,1)
    call(g,"L_conv1")
    g("s_waitcnt vmcnt(0)"); arrive_w(g,BY2,1)
    wait_bar(g,*BY2,1)

def conv_subs(g):
    for hi in range(2):
        g.label(f"L_conv{hi}")
        conv(g,hi,sRow,(lambda: wait_wg(g,*BB,24)) if hi==0 else None)
        g("s_setpc_b64 s[76:77]")
def call(g, label):
    l=g.uniq("ca")
    g("s_getpc_b64 s[76:77]"); g.label(l)
    g(f"s_add_u32 s76, s76, {label}-{l}"); g("s_addc_u32 s77, s77, -1")
    g("s_swappc_b64 s[76:77], s[76:77]")
def qkv_conv(g, hi):
    g(f"s_mul_i32 s{sLB}, s{sW}, {CH_LDS}"); g(f"s_add_u32 s{sLB}, s{sLB}, 81920")
    g(f"s_mov_b32 s{sCh}, s75"); g(f"s_mov_b32 s{sRow}, 640")
    call(g,f"L_conv{hi}")
    arrive(g,BY2 if hi else BY1)
    tl(g,bk.TRACE[0],DBG3+16384,101,4+hi,131)
    if not hi:
        wait_wg(g,*BB2,24)
        g(f"s_mov_b32 s{sCh}, s75"); conv_pref(g,1)
```

```python
from asmlib import *
from layout import *
from common import *
import math
MF32="v_mfma_f32_32x32x16_bf16"
W2="s[12:15]"
TRACE=[False]
OPT={}
def trace(g, sItem, ev, vT):
    if not TRACE[0]: return
    g(f"s_memrealtime s[{84+2*ev}:{85+2*ev}]")
    g("s_waitcnt lgkmcnt(0)")
def tflush(g, sItem, v8):
    if not TRACE[0]: return
    g(f"s_lshl_b32 s96, s{sX}, 5"); g(f"s_add_u32 s96, s96, s{sTK}"); g("s_lshl_b32 s96, s96, 2"); g(f"s_add_u32 s96, s96, s{sW}")
    g("s_mul_i32 s96, s96, 128"); g(f"s_add_u32 s96, s96, s{sItem}"); g("s_lshl_b32 s96, s96, 5"); g(f"s_add_u32 s96, s96, {DBG2}")
    for i in range(6): g(f"v_mov_b32 v{v8+i}, s{84+2*i}")
    g("s_mov_b64 exec, 1")
    g(f"buffer_store_dwordx4 v[{v8}:{v8+3}], off, {WS}, s96")
    g(f"buffer_store_dwordx2 v[{v8+4}:{v8+5}], off, {WS}, s96 offset:16")
    g("s_mov_b64 exec, -1")

def tr32_addr(g, vD, vT):
    g(f"v_lshrrev_b32 v{vD}, 5, v0")
    g(f"v_lshlrev_b32 v{vD}, 8, v{vD}")
    g(f"v_and_b32 v{vT}, 12, v0")
    g(f"v_lshl_add_u32 v{vD}, v{vT}, 4, v{vD}")
    g(f"v_and_b32 v{vT}, 3, v0")
    g(f"v_lshl_add_u32 v{vD}, v{vT}, 3, v{vD}")
    g(f"v_lshrrev_b32 v{vT}, 1, v0")
    g(f"v_xor_b32 v{vT}, v{vT}, v0")
    g(f"v_and_b32 v{vT}, 16, v{vT}")
    g(f"v_lshl_add_u32 v{vD}, v{vT}, 1, v{vD}")

def load_w32(g, nst, row_stride, sA, sLB, vOff, vA, vT, sRot, phase=None):
    if phase!=1:
        fl_voff(g, vOff, vT, row_stride, 256)
        g(f"s_lshl_b32 s{sLB}, s{sW}, 13")
        g(f"s_mul_i32 s3, s{sW}, {32*row_stride}"); g(f"s_add_u32 s{sA}, s{sA}, s3")
        for B in range(nst):
            g(f"s_mul_i32 s{sTO}, s{sRot+B}, {128*row_stride}"); g(f"s_add_u32 s{sTO}, s{sTO}, s{sA}")
            fl_dma(g, vOff, sTO, 8, 4*row_stride, sLB, B*32768, two=True)
    if phase==0: return
    g(f"v_lshrrev_b32 v{vA}, 3, v0"); g(f"v_and_b32 v{vA}, 4, v{vA}"); g(f"v_bfe_u32 v{vT}, v0, 2, 2"); g(f"v_or_b32 v{vA}, v{vA}, v{vT}")
    g(f"v_bfe_u32 v{vT}, v0, 4, 1"); g(f"v_xor_b32 v{vT}, v{vT}, v{vA}"); g(f"s_lshl_b32 s3, s{sW}, 1"); g(f"v_xor_b32 v{vT}, s3, v{vT}")
    g(f"v_lshlrev_b32 v{vA}, 8, v{vA}"); g(f"v_lshl_add_u32 v{vA}, v{vT}, 5, v{vA}")
    g(f"v_and_b32 v{vT}, 3, v0"); g(f"v_lshl_add_u32 v{vA}, v{vT}, 3, v{vA}")
    for B in range(nst):
        g(f"s_waitcnt vmcnt({8*(nst-1-B)})"); g("s_barrier")
        for f in range(4):
            for gp in range(2):
                r=32*B+8*f+4*gp
                g(f"ds_read_b64_tr_b16 a[{r}:{r+1}], v{vA} offset:{f*8192+gp*2048}")
                g(f"ds_read_b64_tr_b16 a[{r+2}:{r+3}], v{vA} offset:{f*8192+gp*2048+4096}")
        g(f"v_add_u32 v{vA}, 0x8000, v{vA}")
    g("s_waitcnt lgkmcnt(0)")
    g("s_barrier")
    tl(g,TRACE[0],DBG3+16384,101,1)

def rot_table(g, sRot, sSrc, nst):
    for B in range(nst):
        g(f"s_add_u32 s{sRot+B}, s{sSrc}, {B}")
        g(f"s_sub_u32 s3, s{sRot+B}, {nst}")
        g(f"s_cmp_ge_u32 s{sRot+B}, {nst}"); g(f"s_cselect_b32 s{sRot+B}, s3, s{sRot+B}")

def gemm_stream(g, nst, Rd, Mf, staged, hooks={}, extra=(), every=3, x0=0):
    K=8*nst; LA=4; extra=list(extra); n=[0]
    def Wt(B):
        if staged:
            g(f"s_waitcnt vmcnt({2*(nst-1-B)+n[0]})"); g("s_barrier")
    Wt(0)
    for k in range(LA): g(Rd(k))
    for k in range(K):
        if k in hooks: hooks[k]()
        g(f"s_waitcnt lgkmcnt({min(LA,K-k)-1})")
        if OPT.get("nomf")==2 and k>0:
            import re
            m=re.match(r"\S+ v\[(\d+):\d+\], (\S+), (\S+), .*",Mf(k)); c=int(m.group(1))+8*(k&1)
            g(f"{MF} {q4('v',c)}, {m.group(2)}, {m.group(3)}, {q4('v',c)}"); g(f"{MF} {q4('v',c+4)}, {m.group(3)}, {m.group(2)}, {q4('v',c+4)}")
        else: g("s_nop 6" if (OPT.get("nomf") and k>0) else Mf(k))
        if OPT.get("slow") and not staged: g(f"s_nop {OPT['slow']}")
        r=k+LA
        if r<K:
            if r%8==0: Wt(r//8)
            g(Rd(r))
        if extra and k>=x0 and (k-x0)%every==0:
            g(extra.pop(0)); n[0]+=1
    assert not extra

L_FLAG=163840-64

def flag_store(g, vT, sAddr, sVal, fl=" sc1"):
    g(f"v_mov_b32 v{vT}, s{sVal}")
    g("s_mov_b64 exec, 1")
    g(f"buffer_store_dword v{vT}, off, {WS}, s{sAddr}{fl}")
    g("s_mov_b64 exec, -1")

sSlow=80
def group_local(g, v):
    import pre
    pre.dbsrd(g)
    lp=g.uniq("gl"); ld=g.uniq("gld")
    g(f"v_lshlrev_b32 v{v}, 5, v0"); g(f"s_mov_b32 s{sTO}, 0")
    g.label(lp)
    g(f"buffer_load_dword v{v+1}, v{v}, {pre.DB}, 0 offen sc1")
    g("s_waitcnt vmcnt(0)")
    g(f"v_readlane_b32 s3, v{v+1}, s{sX}"); g(f"s_mov_b32 s{sSlow}, {1 if OPT.get('force_slow') else 0}"); g("s_nop 2")
    g("s_cmp_ge_u32 s3, 32"); g(f"s_cbranch_scc1 {ld}")
    g(f"s_mov_b32 s{sSlow}, 0")
    for i in range(8):
        g(f"v_readlane_b32 s3, v{v+1}, {i}"); g("s_nop 3"); g(f"s_add_u32 s{sSlow}, s{sSlow}, s3")
    g(f"s_cmp_ge_u32 s{sSlow}, 256"); g(f"s_cbranch_scc1 {ld}")
    g("s_sleep 4")
    timeout(g, lp)
    g.label(ld)

def blk(g, sD, sSeg, sBase, far, sN=None):
    g(f"s_lshl_b32 s{sD}, s{sSeg}, 19"); g(f"s_add_u32 s{sD}, s{sD}, s{sBase}")
    if sN is not None: g(f"s_xor_b32 s{sD}, s{sD}, s{sN}")
    elif far: g(f"s_xor_b32 s{sD}, s{sD}, 8192")
def hblk(g, sD, sH):
    g(f"s_and_b32 s100, s{sH}, 1"); g("s_lshl_b32 s100, s100, 13"); g(f"s_lshl_b32 s{sD}, s{sH}, 14"); g(f"s_add_u32 s{sD}, s{sD}, s100")

def poll_ge(g, vD, vAddr, sOff, need, mask=None, sleep=2):
    lp=g.uniq("pl"); ld=g.uniq("pld")
    g(f"s_mov_b32 s{sTO}, 0")
    if mask: g(f"s_mov_b64 exec, {mask}")
    g.label(lp)
    g(f"buffer_load_dword v{vD}, v{vAddr}, {WS}, {sOff} offen sc1")
    g("s_waitcnt vmcnt(0)")
    g(f"v_cmp_gt_u32 vcc, {need}, v{vD}")
    g(f"s_cbranch_vccz {ld}")
    if sleep: g(f"s_sleep {sleep}")
    timeout(g, lp)
    g.label(ld)
    if mask: g("s_mov_b64 exec, -1")

def signal(g, vOne, vAddr, sOff, mask, off=0):
    g(f"v_mov_b32 v{vOne}, 1")
    g("s_mov_b32 exec_hi, 0" if mask=="lo32" else f"s_mov_b64 exec, {mask}")
    g(f"buffer_atomic_add v{vOne}, v{vAddr}, {WS}, s{sOff} offen" + (f" offset:{off}" if off else ""))
    g("s_mov_b64 exec, -1")

def wait_cnt(g, vD, vAddr, sOff, need, mask="1", sleep=1, v2=None):
    lp=g.uniq("wc"); ld=g.uniq("wcd")
    g(f"s_mov_b32 s{sTO}, 0")
    g(f"s_mov_b64 exec, {mask}")
    poll=lambda v: (g(f"v_mov_b32 v{v}, 0"), g(f"buffer_atomic_add v{v}, v{vAddr}, {WS}, {sOff} offen sc0"))
    if v2 is not None and OPT.get("pipe",1):
        poll(vD); g(f"s_sleep {OPT.get('pipe_gap',5)}")
        g.label(lp)
        for a,c in ((v2,vD),(vD,v2)):
            poll(a)
            g("s_waitcnt vmcnt(1)")
            g(f"v_cmp_gt_u32 vcc, {need}, v{c}")
            g(f"s_cbranch_vccz {ld}")
    else:
        g.label(lp)
        poll(vD)
        g("s_waitcnt vmcnt(0)")
        g(f"v_cmp_gt_u32 vcc, {need}, v{vD}")
        g(f"s_cbranch_vccz {ld}")
        if sleep: g(f"s_sleep {sleep}")
    timeout(g, lp)
    g.label(ld)
    g("s_mov_b64 exec, -1")

def qkv(g, isv):
    N="qkv"+("v" if isv else "q")
    sH,sTy,sI,sA,sB,sLB,sOut,sFl,sSeg,sP1,sFx,sRot=52,53,54,55,56,57,58,59,60,61,62,64
    sFl1,sHf=63,82
    vOff,vA,vT,vSt,vFa,vPl,vLf=1,2,3,4,5,6,7
    vAd=8
    vF=32
    vC=64
    vPk=80
    g.label(f"L_{N}")
    g(f"s_mul_i32 s{sLB}, s{sW}, 40960")
    g(f"s_mul_i32 s{sFx}, s{sH}, 3"); g(f"s_add_u32 s{sFx}, s{sFx}, s{sTy}")
    g(f"s_mul_i32 s3, s{sFx}, 13108"); g("s_lshr_b32 s3, s3, 16"); g("s_mul_i32 s3, s3, 5"); g(f"s_sub_u32 s{sA}, s{sFx}, s3")
    rot_table(g, sRot, sA, 5)
    g(f"s_lshl_b32 s{sA}, s{sH}, 8")
    import pre
    load_w32(g, 5, 8192, sA, sLB, 4, vA, vT, sRot, 0)
    pre.dbsrd(g)
    g(f"buffer_load_dword v30, off, {pre.DB}, 0 offset:{pre.BA[0]+128} sc1")
    load_w32(g, 5, 8192, sA, sLB, 4, vA, vT, sRot, 1)
    lA=g.uniq("qa")
    g("v_cmp_eq_u32 vcc, 0, v30"); g(f"s_cbranch_vccz {lA}")
    pre.wait_bar(g,*pre.BA,1)
    g.label(lA)
    for B in range(5): g(f"s_lshl_b32 s{sRot+B}, s{sRot+B}, 8")
    vOff2=24; vSg=30; SM="s[78:79]"
    g(f"s_cmp_eq_u32 s{sTy}, 0"); g("s_cselect_b32 s78, 2, 3"); g("s_mov_b32 s79, 0")
    def vsetup():
        g(f"v_lshrrev_b32 v{vOff}, 4, v0"); g("s_mov_b32 s3, 1280"); g(f"v_mul_lo_u32 v{vOff}, v{vOff}, s3")
        g(f"v_and_b32 v{vT}, 15, v0"); g(f"v_lshl_add_u32 v{vOff}, v{vT}, 4, v{vOff}")
        g(f"v_add_u32 v{vPl}, {4*1280}, v{vOff}")
        g(f"v_mov_b32 v{vOff2}, v{vPl}")
        g(f"v_and_b32 v{vA}, 31, v0"); g(f"v_lshlrev_b32 v{vA}, 8, v{vA}")
        g(f"v_lshrrev_b32 v{vSt}, 5, v0"); g(f"v_xor_b32 v{vSt}, v{vSt}, v{vT}")
        for j in range(8):
            g(f"v_xor_b32 v{vAd+j}, {2*j}, v{vSt}")
            g(f"v_lshl_add_u32 v{vAd+j}, v{vAd+j}, 4, v{vA}")
            g(f"v_add_u32 v{vAd+8+j}, 40960, v{vAd+j}")
        g(f"v_lshrrev_b32 v{vSt}, 5, v0"); g(f"v_lshlrev_b32 v{vSt}, 8, v{vSt}")
        g(f"v_lshl_add_u32 v{vSt}, v{vT}, 4, v{vSt}")
        g(f"v_and_b32 v{vA}, 16, v0"); g(f"v_lshl_add_u32 v{vSt}, v{vA}, {6 if isv else 8}, v{vSt}")
        g(f"s_lshl_b32 s3, s{sW}, {11 if isv else 10}"); g(f"v_add_u32 v{vSt}, s3, v{vSt}")
        g(f"v_mul_u32_u24 v{vFa}, {CXNS}, v0"); g(f"v_mov_b32 v{vLf}, {L_FLAG}"); g(f"v_mul_u32_u24 v{vSg}, {CQA-CQKV}, v0")
    vsetup()
    g(f"s_lshl_b32 s75, s{sFx}, 2"); g(f"s_add_u32 s75, s75, s{sW}")
    hblk(g,sOut,sH); g(f"s_add_u32 s{sOut}, s{sOut}, {VO if isv else KQ}")
    g(f"s_cmp_eq_u32 s{sTy}, 0"); g(f"s_cselect_b32 s{sHf}, 8192, 0")
    g(f"s_lshl_b32 s{sFl}, s{sH}, 8"); g(f"s_add_u32 s{sFl}, s{sFl}, {CQKV}")
    g(f"s_lshl_b32 s{sB}, s{sW}, 11")
    g(f"s_mov_b32 s{sI}, 0")
    g(f"s_mov_b32 s{sP1}, 0")
    def dma(layer, sS, defer=False, buf=None, cond=None):
        buf=layer if buf is None else buf
        g(f"s_mul_i32 s{sA}, s{sS}, 40960"); g(f"s_mul_i32 s3, s{sW}, {8*1280}"); g(f"s_add_u32 s{sA}, s{sA}, s3"); g(f"s_add_u32 s{sA}, s{sA}, {XN+layer*64*40960}")
        if cond is not None: g(f"s_cmp_eq_u32 s{cond}, 0"); g(f"s_cselect_b32 s{sA}, s{sA}, {OOB}")
        L=[f"s_add_u32 m0, s{sB}, {buf*40960+B*8192+1024*e}\ns_add_u32 s3, s{sA}, s{sRot+B}\nbuffer_load_dwordx4 v{vOff2 if e else vOff}, {WS}, s3 offen sc1 lds" for B in range(5) for e in range(2)]
        if defer: return L
        for x in L: g(x)
    def compute(layer, staged, hooks={}, extra=(), buf=None):
        buf=layer if buf is None else buf
        Rd=lambda k: f"ds_read_b128 {q4('v',vF+4*(k%8))}, v{vAd+8*buf+k%8} offset:{(k//8)*8192}"
        def Mf(k):
            x=q4('v',vF+4*(k%8)); w=q4('a',4*k)
            return f"{MF32} v[{vC}:{vC+15}], {x if isv else w}, {w if isv else x}, {'0' if k==0 else f'v[{vC}:{vC+15}]'}"
        gemm_stream(g,5,Rd,Mf,staged,hooks,extra,3)
        blk(g,3,sSeg,sOut,0,sHf)
        if layer: g(f"s_add_u32 s3, s3, {LST}")
        g("s_nop 8")
        P=vPk+8*buf
        for c in range(2):
            for h in range(2):
                a=c+2*h
                g(f"v_cvt_pk_bf16_f32 v{P+4*c+2*h}, v{vC+4*a}, v{vC+4*a+1}")
                g(f"v_cvt_pk_bf16_f32 v{P+4*c+2*h+1}, v{vC+4*a+2}, v{vC+4*a+3}")
            g(f"buffer_store_dwordx4 {q4('v',P+4*c)}, v{vSt}, {WS}, s3 offen offset:{512*c} sc1")
    def pend_flag():
        l=g.uniq("pf")
        g(f"s_cmp_eq_u32 s{sP1}, 0"); g(f"s_cbranch_scc1 {l}")
        g(f"s_lshl_b32 s3, s{sP1}, 2"); g(f"s_add_u32 s3, s3, s{sFl}"); g("s_sub_u32 s3, s3, 4")
        signal(g, vT, vSg, 3, SM)
        g(f"s_mov_b32 s{sP1}, 0")
        g.label(l)
    def sig2():
        g(f"s_lshl_b32 s3, s{sI}, 2"); g(f"s_add_u32 s3, s3, s{sFl1}")
        signal(g, vT, vSg, 3, SM)
    assert AHEAD%2==0
    g(f"s_mov_b32 s{pre.sCh}, s75")
    dma(0, sI)
    g("s_waitcnt vmcnt(0)")
    g.label(f"L_{N}_pre")
    for bf in range(2):
        g("s_barrier")
        g(f"s_mov_b32 s{sSeg}, s{sI}"); g(f"s_add_u32 s{sI}, s{sI}, 1")
        def h_p():
            g(f"s_waitcnt vmcnt(7)"); pend_flag()
        compute(0, False, {20:h_p}, extra=dma(0, sI, True, 1-bf), buf=bf)
        g(f"s_mov_b32 s{sP1}, s{sI}")
        if bf==0:
            l1=g.uniq("f1")
            g(f"s_cmp_lg_u32 s{sI}, 1"); g(f"s_cbranch_scc1 {l1}")
            g("s_waitcnt vmcnt(0)"); pend_flag()
            tl(g,TRACE[0],DBG3+16384,101,2)
            pre.conv_pref(g,0)
            l2=g.uniq("f2"); g(f"s_branch {l2}")
            g.label(l1)
        g("s_waitcnt vmcnt(2)")
        if bf==0: g.label(l2)
    for hi in range(1):
        lcv=g.uniq("cv")
        g(f"s_cmp_lg_u32 s{sI}, {OPT.get('conv_at',4) if hi==0 else OPT.get('conv1_at',16)}"); g(f"s_cbranch_scc1 {lcv}")
        g("s_waitcnt vmcnt(0)"); pend_flag()
        pre.qkv_conv(g,hi); vsetup()
        g.label(lcv)
    for bar,row in ((pre.BC1,pre.ROW1),(pre.BC2,pre.ROW2)):
        lcv=g.uniq("cb")
        if row//32-2>AHEAD: continue
        g(f"s_cmp_lg_u32 s{sI}, {row//32-2}"); g(f"s_cbranch_scc1 {lcv}")
        pre.wait_wg(g,*bar,25)
        g.label(lcv)
    g(f"s_cmp_lt_u32 s{sI}, {AHEAD}"); g(f"s_cbranch_scc1 L_{N}_pre")
    g("s_waitcnt vmcnt(0)"); pend_flag()
    g(f"s_lshl_b32 s{sFx}, s{sFx}, 8"); g(f"s_add_u32 s{sFx}, s{sFx}, {CXN}")
    g(f"s_add_u32 s{sFl1}, s{sFl}, {32*256-4*AHEAD}")
    g.label(f"L_{N}_block")
    lw=g.uniq("w"); lw2=g.uniq("w")
    g(f"s_lshl_b32 s{sA}, s{sI}, 2"); g(f"s_add_u32 s{sA}, s{sA}, s{sFx}"); g(f"s_sub_u32 s{sA}, s{sA}, {4*AHEAD}")
    g(f"s_cmp_lg_u32 s{sW}, 0"); g(f"s_cselect_b32 s3, {OOB}, s{sA}")
    g(f"v_mov_b32 v{vPl}, 8"); g("s_mov_b64 exec, 15"); g(f"v_mov_b32 v{vPl}, 0")
    g(f"buffer_atomic_add v{vPl}, v{vFa}, {WS}, s3 offen sc0")
    g("s_mov_b64 exec, -1")
    g("s_waitcnt vmcnt(0)")
    pend_flag()
    g(f"s_cmp_lg_u32 s{sW}, 0"); g(f"s_cbranch_scc1 {lw}")
    g(f"v_cmp_gt_u32 vcc, 8, v{vPl}"); g(f"s_cbranch_vccz {lw}")
    wait_cnt(g, 28, vFa, f"s{sA}", "8", mask="15", v2=29)
    g.label(lw)
    g("s_barrier")
    g(f"s_branch L_{N}_loop")
    sRd,sPa=69,70
    def h_poll():
        g(f"v_mov_b32 v{vPl}, 8\ns_mov_b64 exec, 15\nv_mov_b32 v{vPl}, 0\nbuffer_atomic_add v{vPl}, v{vFa}, {WS}, s{sPa} offen sc0\ns_mov_b64 exec, -1")
    def share(n):
        lw=g.uniq("w")
        g(f"s_waitcnt vmcnt({n})")
        g(f"s_cmp_lg_u32 s{sW}, 0"); g(f"s_cbranch_scc1 {lw}")
        g(f"v_cmp_gt_u32 vcc, 8, v{vPl}"); g("s_nop 1"); g(f"v_mov_b32 v{vT}, vcc_lo")
        g(f"ds_write_b32 v{vLf}, v{vT}")
        g("s_waitcnt lgkmcnt(0)")
        g.label(lw)
        g("s_barrier")
        g(f"ds_read_b32 v{vT}, v{vLf}")
        g("s_waitcnt lgkmcnt(0)")
        g(f"v_readfirstlane_b32 s3, v{vT}")
    l_no0=g.uniq("n0")
    for fast in (1,0):
        g.label(f"L_{N}_fast" if fast else f"L_{N}_loop")
        if pre.ROW2//32-2>AHEAD:
            lc=g.uniq("c2")
            g(f"s_cmp_lg_u32 s{sI}, {pre.ROW2//32}"); g(f"s_cbranch_scc1 {lc}")
            pre.wait_wg(g,*pre.BC2,25)
            g.label(lc)
        trace(g,sI,0,vT)
        g(f"s_sub_u32 s{sSeg}, s{sI}, {AHEAD}")
        if not fast: dma(1, sSeg)
        g(f"s_lshl_b32 s{sPa}, s{sI}, 2"); g(f"s_add_u32 s{sPa}, s{sPa}, s{sFx}"); g(f"s_sub_u32 s{sPa}, s{sPa}, {4*AHEAD-4}")
        g(f"s_cmp_lg_u32 s{sW}, 0"); g(f"s_cselect_b32 s{sPa}, {OOB}, s{sPa}")
        g(f"s_min_u32 s{sTO}, s{sI}, 63")
        compute(1, not fast, {0:lambda: trace(g,sI,4,vT), 30:h_poll}, extra=dma(0, sTO, True))
        if fast: g(f"s_branch L_{N}_mid")
    g.label(f"L_{N}_mid")
    trace(g,sI,1,vT)
    g(f"s_cmp_ge_u32 s{sI}, 64"); g(f"s_cbranch_scc1 {l_no0}")
    share(2)
    g(f"s_mov_b32 s{sRd}, s3")
    g(f"s_add_u32 s{sTO}, s{sSeg}, 1")
    g(f"s_mov_b32 s{sSeg}, s{sI}")
    def h_sig():
        g("s_waitcnt vmcnt(6)")
        sig2(); pend_flag()
        trace(g,sI,2,vT)
    compute(0, False, {18:h_sig, OPT.get('qkv_poll',28):h_poll}, extra=dma(1, sTO, True, cond=sRd))
    trace(g,sI,3,vT)
    tflush(g,sI,100)
    g(f"s_add_u32 s{sI}, s{sI}, 1"); g(f"s_mov_b32 s{sP1}, s{sI}")
    share(2+(2 if TRACE[0] else 0))
    g(f"s_cmp_eq_u32 s{sRd}, 0"); g(f"s_cbranch_scc1 L_{N}_fast")
    g("s_cmp_eq_u32 s3, 0"); g(f"s_cbranch_scc1 L_{N}_loop")
    g(f"s_branch L_{N}_block")
    g.label(l_no0)
    g("s_waitcnt vmcnt(0)")
    sig2()
    tflush(g,sI,100)
    g(f"s_add_u32 s{sI}, s{sI}, 1")
    g(f"s_cmp_lt_u32 s{sI}, {64+AHEAD}"); g(f"s_cbranch_scc1 L_{N}_block")
    g("s_endpgm")

def xsum4(g, v, t, op):
    g(f"v_mov_b32 v{t}, v{v}"); g("s_nop 1")
    g(f"v_permlane16_swap_b32 v{v}, v{t}")
    g(f"{op} v{v}, v{v}, v{t}")
    g(f"v_mov_b32 v{t}, v{v}"); g("s_nop 1")
    g(f"v_permlane32_swap_b32 v{v}, v{t}")
    g(f"{op} v{v}, v{v}, v{t}")

def rnd_pairs(g, regs, tmp):
    for i in range(0,len(regs),2):
        a,b=regs[i],regs[i+1]
        g(f"v_cvt_pk_bf16_f32 v{tmp}, v{a}, v{b}")
        g(f"v_lshlrev_b32 v{a}, 16, v{tmp}")
        g(f"v_and_b32 v{b}, 0xffff0000, v{tmp}")

def attn(g):
    N="att"
    sH,sLam,sS,sA,sB,sIn,sEXb,sOut,sFO,sFW,sSc,sL2e,sNeed,sEX=52,53,54,55,56,57,58,59,60,61,62,63,64,65
    vL16,vL16b,vT,vT2,vZ,vL16c,vSt=1,2,3,4,5,6,7
    vBm,vBd=8,12
    vKM,vVM,vS,vO=32,48,64,88
    vCan,vSig,vWf=30,31,29
    vPm,vP=[152,160],[168,172]
    vM1,vL1,vMx,vTx,vF=[16,17],[18,19],[20,21],[22,23],[24,26]
    vOp=176
    aQ,aK,aV=0,32,64
    g.label(f"L_{N}")
    import pre
    MF16="v_mfma_f32_16x16x16_bf16"; vKa,vL8,vNeg,sAP=vL16c,vCan,208,66
    g(f"s_mul_i32 s3, s{sW}, 24"); g(f"s_add_u32 s3, s3, s{pre.sHI}"); g("s_sub_u32 s3, s3, 72")
    g("s_cmp_lt_u32 s3, 64"); g(f"s_cbranch_scc1 L_{N}_go")
    g(f"s_mov_b32 s{pre.sHW}, s3"); g(f"s_mul_i32 s{pre.sLB}, s{sW}, {pre.CH_LDS}")
    pre.conv_hi(g)
    g("s_endpgm")
    g.label(f"L_{N}_go")
    g(f"s_and_b32 s{sLam}, s3, 1"); g(f"s_lshr_b32 s{sH}, s3, 1")
    g(f"v_lshlrev_b32 v{vL16}, 4, v0"); g(f"v_add_u32 v{vL16b}, 4096, v{vL16}"); g(f"v_mov_b32 v{vZ}, 0"); g(f"v_lshlrev_b32 v{vL8}, 3, v0")
    g(f"v_and_b32 v{vKa}, 0x1e0, v{vL8}"); g(f"v_and_b32 v{vT}, 16, v{vL16}"); g(f"v_add_u32 v{vKa}, v{vKa}, v{vT}")
    g(f"s_lshl_b32 s3, s{sLam}, 5"); g(f"s_add_u32 s3, s3, s{sH}")
    g(f"s_lshl_b32 s{sFW}, s3, 8"); g(f"s_add_u32 s{sFW}, s{sFW}, {CQA}")
    g(f"s_lshl_b32 s{sAP}, s3, 7"); g(f"s_add_u32 s{sAP}, s{sAP}, {APG}")
    g(f"s_lshl_b32 s{sIn}, s{sLam}, 11"); g(f"s_add_u32 s{sIn}, s{sIn}, s{sH}"); hblk(g,sIn,sIn); g(f"s_add_u32 s{sIn}, s{sIn}, {KQ}")
    g(f"s_mul_i32 s{sEXb}, s{sLam}, {NEX*32*4096}"); g(f"s_lshl_b32 s3, s{sH}, 12"); g(f"s_add_u32 s{sEXb}, s{sEXb}, s3"); g(f"s_add_u32 s{sEXb}, s{sEXb}, {EX}")
    g(f"s_add_u32 s{sOut}, s{sIn}, {VO-KQ}")
    g(f"s_lshl_b32 s{sFO}, s{sLam}, 8"); g(f"s_add_u32 s{sFO}, s{sFO}, {CO}")
    g(f"s_lshr_b32 s3, s{sH}, 2"); g(f"s_mul_i32 s3, s3, {5*512}"); g(f"v_lshl_add_u32 v{vSig}, v0, 9, s3")
    for i in range(4): g(f"v_mov_b32 v{vNeg+i}, -1")
    g(f"v_lshrrev_b32 v{vT}, 4, v0"); g(f"v_lshlrev_b32 v{vSt}, 9, v{vT}"); g(f"v_and_b32 v{vT2}, 15, v0"); g(f"v_lshl_add_u32 v{vSt}, v{vT2}, 4, v{vSt}")
    g(f"v_mov_b32 v{vO}, 0xff61b1e6")
    g(f"v_lshlrev_b32 v{vT}, 2, v{vT}")
    for b in range(4):
        g(f"v_add_u32 v{vO+1}, {b}, v{vT}")
        g(f"v_cmp_gt_u32 vcc, v{vO+1}, v{vT2}"); g("s_nop 1")
        g(f"v_cndmask_b32 v{vBd+b}, 0, v{vO}, vcc")
    for i in range(24): g(f"v_mov_b32 v{152+i}, 0")
    g(f"s_mov_b32 s{sSc}, {hex(f32bits(128**-0.5))}"); g(f"s_mov_b32 s{sL2e}, {hex(f32bits(math.log2(math.e)))}")
    g(f"s_mov_b32 s{sS}, 0")
    def fetch():
        blk(g,sB,sS,sIn,0)
        g(f"s_cmp_lt_u32 s{sS}, 64"); g(f"s_cselect_b32 s{sB}, s{sB}, {OOB}")
        for ty in (0,1,2):
            g([f"s_xor_b32 s3, s{sB}, 8192", f"s_mov_b32 s3, s{sB}", f"s_add_u32 s3, s{sB}, {VO-KQ}"][ty])
            for i in range(8):
                g(f"buffer_load_dwordx4 {q4('a',32*ty+4*i)}, v{vL16 if i<4 else vL16b}, {WS}, s3 offen offset:{1024*(i%4)} sc1{' nt' if ty<OPT.get('att_nt',0) else ''}")
    wait_cnt(g, vT, vZ, f"s{sFW}", "12", sleep=16)
    fetch()
    ldk=[f"buffer_load_dwordx4 {q4('v',vKM+4*i)}, v{vKa}, {WS}, s{sEX} offen offset:{512*i} sc1" for i in range(4)]
    ldv=[f"buffer_load_dwordx2 v[{vVM+2*i}:{vVM+2*i+1}], v{vL8}, {WS}, s{sEX} offen offset:{2048+512*i} sc1" for i in range(4)]
    g.label(f"L_{N}_loop")
    trace(g,sS,0,vT2)
    g(f"s_and_b32 s3, s{sS}, {NEX-1}"); g(f"s_lshl_b32 s{sEX}, s3, 17"); g(f"s_add_u32 s{sEX}, s{sEX}, s{sEXb}")
    for x in ldk+ldv: g(x)
    blk(g,sA,sS,sOut,1)
    g("s_waitcnt vmcnt(16)")
    S0,S1=vS,vS+12
    for j in range(4): g(f"{MF} {q4('v',S0+4)}, {q4('a',aK+4*j)}, {q4('a',aQ+4*j)}, {q4('v',vBd) if j==0 else q4('v',S0+4)}")
    for j in range(4): g(f"{MF} {q4('v',S1+4)}, {q4('a',aK+4*j)}, {q4('a',aQ+16+4*j)}, {'0' if j==0 else q4('v',S1+4)}")
    for j in range(4): g(f"{MF} {q4('v',S1+8)}, {q4('a',aK+16+4*j)}, {q4('a',aQ+16+4*j)}, {q4('v',vBd) if j==0 else q4('v',S1+8)}")
    g("s_nop 7")
    def scale(R):
        rnd_pairs(g,R,vT)
        for r in R: g(f"v_mul_f32 v{r}, s{sSc}, v{r}")
        rnd_pairs(g,R,vT)
    scale([S0+4+i for i in range(4)]+[S1+4+i for i in range(8)])
    def x2(a,t,op):
        L=[]
        for sw in ("v_permlane16_swap_b32","v_permlane32_swap_b32"):
            L+=[f"v_mov_b32 v{t[0]}, v{a[0]}",f"v_mov_b32 v{t[1]}, v{a[1]}","s_nop 0",f"{sw} v{a[0]}, v{t[0]}",f"{sw} v{a[1]}, v{t[1]}",
                f"{op} v{a[0]}, v{a[0]}, v{t[0]}",f"{op} v{a[1]}, v{a[1]}, v{t[1]}"]
        return L
    g(f"v_max3_f32 v{vM1[0]}, v{S0+4}, v{S0+5}, v{S0+6}"); g(f"v_max_f32 v{vM1[0]}, v{vM1[0]}, v{S0+7}")
    g(f"v_max3_f32 v{vM1[1]}, v{S1+4}, v{S1+5}, v{S1+6}"); g(f"v_max3_f32 v{vM1[1]}, v{vM1[1]}, v{S1+7}, v{S1+8}")
    g(f"v_max3_f32 v{vM1[1]}, v{vM1[1]}, v{S1+9}, v{S1+10}"); g(f"v_max_f32 v{vM1[1]}, v{vM1[1]}, v{S1+11}")
    for x in x2(vM1,vTx,"v_max_f32"): g(x)
    SG=[[S0+4+i for i in range(4)],[S1+4+i for i in range(8)]]
    for u in range(2):
        g(f"v_mul_f32 v{vTx[u]}, s{sL2e}, v{vM1[u]}")
        for r in SG[u]: g(f"v_fma_f32 v{r}, v{r}, s{sL2e}, -v{vTx[u]}")
    for u in range(2):
        for r in SG[u]: g(f"v_exp_f32 v{r}, v{r}")
    for u in range(2):
        g(f"v_add_f32 v{vL1[u]}, v{SG[u][0]}, v{SG[u][1]}")
        for r in SG[u][2:]: g(f"v_add_f32 v{vL1[u]}, v{vL1[u]}, v{r}")
    trace(g,sS,1,vT2)
    def chk(base,n):
        R=[base+i for i in range(0,n,2)]
        g(f"v_max_u32 v{vT}, v{R[0]}, v{R[1]}")
        for i in range(2,n//2,2): g(f"v_max3_u32 v{vT}, v{vT}, v{R[i]}, v{R[i+1]}")
        g(f"v_cmp_eq_u32 vcc, -1, v{vT}")
    lp=g.uniq("pk"); ld=g.uniq("pkd"); l2=g.uniq("pke")
    g(f"s_mov_b32 s{sTO}, 0")
    g("s_waitcnt vmcnt(4)")
    chk(vKM,16)
    g(f"s_cbranch_vccz {ld}")
    g.label(lp)
    g(f"s_sleep {OPT.get('att_sleep',2)}")
    for x in ldk: g(x)
    g("s_waitcnt vmcnt(0)")
    chk(vKM,16)
    g(f"s_cbranch_vccz {l2}")
    timeout(g, lp)
    g.label(l2)
    g(f"s_mov_b32 s{sTO}, 1")
    g.label(ld)
    trace(g,sS,2,vT2)
    for u in range(2):
        for j in range(4): g(f"{MF} {q4('v',vS+12*u)}, {q4('v',vKM+4*j)}, {q4('a',aQ+16*u+4*j)}, {'0' if j==0 else q4('v',vS+12*u)}")
    g(f"v_mov_b32 v{vWf}, 0"); g("s_nop 6")
    scale([S0,S0+1,S1,S1+1])
    l3=g.uniq("nv")
    g(f"s_cmp_eq_u32 s{sTO}, 0"); g(f"s_cbranch_scc1 {l3}")
    for x in ldv: g(x)
    g.label(l3)
    g("s_mov_b64 exec, 1"); g(f"buffer_atomic_add v{vWf}, off, {WS}, s{sFW} offset:4 sc0"); g("s_mov_b64 exec, -1")
    for u in range(2): g(f"v_max3_f32 v{vMx[u]}, v{vS+12*u}, v{vS+12*u+1}, v{vM1[u]}")
    for x in x2(vMx,vTx,"v_max_f32"): g(x)
    for u in range(2):
        Sx=vS+12*u
        g(f"v_mul_f32 v{vMx[u]}, s{sL2e}, v{vMx[u]}")
        g(f"v_fma_f32 v{vF[u]}, v{vM1[u]}, s{sL2e}, -v{vMx[u]}")
        for i in range(2): g(f"v_fma_f32 v{Sx+i}, v{Sx+i}, s{sL2e}, -v{vMx[u]}")
    for u in range(2):
        g(f"v_exp_f32 v{vF[u]}, v{vF[u]}")
        for i in range(2): g(f"v_exp_f32 v{vS+12*u+i}, v{vS+12*u+i}")
    g("s_nop 0")
    for u in range(2):
        Sx=vS+12*u
        g(f"v_fma_f32 v{vL1[u]}, v{vL1[u]}, v{vF[u]}, v{Sx}")
        g(f"v_add_f32 v{vL1[u]}, v{vL1[u]}, v{Sx+1}")
    for x in x2(vL1,vTx,"v_add_f32"): g(x)
    for u in range(2): g(f"v_rcp_f32 v{vL1[u]}, v{vL1[u]}")
    for u in range(2): g(f"v_mul_f32 v{vF[u]}, v{vF[u]}, v{vL1[u]}")
    def norm(u):
        Sx=vS+12*u; L=[]
        for i in range(0,len(SG[u]),2):
            r=SG[u][i]
            L+=[f"v_pk_mul_f32 v[{r}:{r+1}], v[{r}:{r+1}], v[{vF[u]}:{vF[u]+1}] op_sel_hi:[1,0]", f"v_cvt_pk_bf16_f32 v{vP[u]+i//2}, v{r}, v{r+1}"]
        for i in range(2): L.append(f"v_mul_f32 v{Sx+i}, v{Sx+i}, v{vL1[u]}")
        L+=[f"v_cvt_pk_bf16_f32 v{vPm[u]}, v{Sx}, v{Sx+1}", f"v_cvt_pk_bf16_f32 v{vPm[u]+3}, v{Sx}, v{Sx+1}"]
        return L
    pvs=lambda u: [f"{MF} {q4('v',vO+32*u+4*i)}, {q4('a',aV+4*i)}, {q4('v',vP[u])}, 0" for i in range(8)]
    pvm=lambda u: [f"{MF16} {q4('v',vO+32*u+4*i)}, v[{vVM+2*(i//2)}:{vVM+2*(i//2)+1}], v[{vPm[u]+2*(i%2)}:{vPm[u]+2*(i%2)+1}], {q4('v',vO+32*u+4*i)}" for i in range(8)]
    def outs(u):
        L=[]
        for j in range(4):
            L+=[f"v_cvt_pk_bf16_f32 v{vOp+16*u+i}, v{vO+32*u+2*i}, v{vO+32*u+2*i+1}" for i in range(4*j,4*j+4)]
            L+=[f"s_add_u32 s3, s{sA}, {2048*j}\nbuffer_store_dwordx4 {q4('v',vOp+16*u+4*j)}, v{vSt}, {WS}, s3 offen offset:{256*u} sc1"]
        return L
    for x in norm(0): g(x)
    interleave(g, pvs(0), norm(1), per=2)
    for x in pvs(1): g(x)
    lp=g.uniq("pv"); ld=g.uniq("pvd")
    g("s_waitcnt vmcnt(1)")
    g.label(lp)
    chk(vVM,8)
    g(f"s_cbranch_vccz {ld}")
    for x in ldv: g(x)
    g("s_waitcnt vmcnt(0)")
    timeout(g, lp)
    g.label(ld)
    for x in pvm(0): g(x)
    interleave(g, pvm(1), outs(0), per=2, start=1)
    for x in outs(1): g(x)
    for i in range(4): g(f"buffer_store_dwordx4 {q4('v',vNeg)}, v{vL16}, {WS}, s{sEX} offen offset:{1024*i} sc1")
    trace(g,sS,3,vT2)
    g(f"s_add_u32 s{sS}, s{sS}, 1"); g(f"s_add_u32 s{sFW}, s{sFW}, 4")
    g(f"s_cmp_lt_u32 s{sS}, 64"); g(f"s_cselect_b32 s{sNeed}, 12, 0")
    def sigs(n):
        g(f"s_waitcnt vmcnt({n+4})")
        signal(g, vT, vSig, sFO, "31")
        trace(g,sS,4,vT2)
        g(f"s_waitcnt vmcnt({n+1})")
        signal(g, vT, vZ, sAP, "1")
    lj=g.uniq("aj"); lk=g.uniq("ak")
    g("s_waitcnt vmcnt(12)")
    g(f"v_readfirstlane_b32 s3, v{vWf}"); g("s_nop 3"); g(f"s_cmp_ge_u32 s3, s{sNeed}"); g(f"s_cbranch_scc1 {lj}")
    sigs(0)
    wait_cnt(g, vT, vZ, f"s{sFW}", f"s{sNeed}", sleep=4)
    fetch()
    g(f"s_branch {lk}")
    g.label(lj)
    fetch()
    sigs(24)
    g.label(lk)
    if TRACE[0]:
        g(f"s_sub_u32 s97, s{sS}, 1"); tflush(g,97,216)
    g(f"s_add_u32 s{sFO}, s{sFO}, 4")
    g(f"s_cmp_lt_u32 s{sS}, 64"); g(f"s_cbranch_scc1 L_{N}_loop")
    g("s_endpgm")

def wo_weights(g, phase):
    sG,sCC,sA,sLB,sRot=52,53,55,57,64
    if phase==0:
        srd(g, 8, 26, 4096*1280)
        g(f"s_mul_i32 s{sLB}, s{sW}, 40960")
        g(f"s_and_b32 s{sA}, s{sCC}, 3")
        rot_table(g, sRot, sA, 4)
        g(f"s_mul_i32 s{sA}, s{sG}, {512*1280}"); g(f"s_lshl_b32 s3, s{sCC}, 8"); g(f"s_add_u32 s{sA}, s{sA}, s3")
    load_w32(g, 4, 1280, sA, sLB, 4, 2, 3, sRot, phase)

def wo(g):
    N="wo"
    WL=LAG+1
    sG,sCC,sT,sA,sB,sLB,sOut,sSeg,sP1,sRot=52,53,54,55,56,57,58,60,61,64
    vOff,vA,vT,vSt,vFa,vNeed,vL16,vSig,vPl,vLf=1,2,3,4,5,6,7,8,9,10
    vF=32; vC=64
    g.label(f"L_{N}")
    for B in range(4): hblk(g,sRot+B,sRot+B); g(f"s_xor_b32 s{sRot+B}, s{sRot+B}, 8192")
    g(f"v_lshlrev_b32 v{vL16}, 4, v0")
    g(f"v_lshrrev_b32 v{vSt}, 5, v0"); g(f"s_mov_b32 s3, {4*2560}"); g(f"v_mul_lo_u32 v{vSt}, v{vSt}, s3")
    g(f"v_and_b32 v{vT}, 31, v0"); g(f"v_lshl_add_u32 v{vSt}, v{vT}, 2, v{vSt}")
    g(f"s_lshl_b32 s3, s{sCC}, 9"); g(f"s_lshl_b32 s{sA}, s{sW}, 7"); g(f"s_add_u32 s3, s3, s{sA}"); g(f"v_add_u32 v{vSt}, s3, v{vSt}")
    g(f"s_mul_i32 s{sOut}, s{sG}, 81920"); g(f"s_add_u32 s{sOut}, s{sOut}, {PB}")
    g(f"v_lshlrev_b32 v{vSig}, 9, v0")
    g(f"s_mul_i32 s3, s{sG}, 5"); g(f"s_add_u32 s3, s3, s{sCC}"); g(f"s_and_b32 s{sA}, s3, 3"); g(f"s_mul_i32 s{sA}, s{sA}, {CPBS}"); g(f"v_add_u32 v{vSig}, s{sA}, v{vSig}")
    g("s_lshl_b32 s3, s3, 9"); g(f"s_add_u32 s3, s3, {CO}")
    g(f"v_mul_u32_u24 v{vFa}, {256-4*WL}, v0"); g(f"v_add_u32 v{vFa}, s3, v{vFa}")
    g(f"v_mov_b32 v{vNeed}, 0"); g(f"v_mov_b32 v{vLf}, {L_FLAG}")
    g(f"s_lshl_b32 s{sB}, s{sW}, 11")
    g(f"s_mov_b32 s{sT}, 0"); g(f"s_mov_b32 s{sP1}, -1")
    def dma(layer, sS, defer=False):
        if sS is not None:
            g(f"s_lshl_b32 s3, s{sG}, 16"); g(f"s_add_u32 s3, s3, s{sB}"); g(f"s_add_u32 s3, s3, {VO+layer*LST}"); blk(g,sA,sS,3,0)
            g(f"s_cmp_lt_u32 s{sS}, 64"); g(f"s_cselect_b32 s{sA}, s{sA}, {OOB}")
        L=[f"s_add_u32 m0, s{sB}, {layer*32768+B*8192}\ns_add_u32 s3, s{sA}, s{sRot+B}\nbuffer_load_dwordx4 v{vL16}, {WS}, s3 offen offset:{1024*e} sc1 lds" for B in range(4) for e in range(2)]
        if defer: return L
        for x in L: g(x)
    def compute(layer, staged, hooks={}, extra=(), every=3, x0=0):
        C=vC+16*layer
        Rd=lambda k: f"ds_read_b128 {q4('v',vF+4*(k%8))}, v{vL16} offset:{layer*32768+k*1024}"
        Mf=lambda k: f"{MF32} v[{C}:{C+15}], {q4('v',vF+4*(k%8))}, {q4('a',4*k)}, {'0' if k==0 else f'v[{C}:{C+15}]'}"
        gemm_stream(g,4,Rd,Mf,staged,hooks,extra,every,x0)
        g(f"s_mul_i32 s{sA}, s{sSeg}, {8*81920}"); g(f"s_add_u32 s{sA}, s{sA}, s{sOut}")
        if layer: g(f"s_add_u32 s{sA}, s{sA}, {64*8*81920}")
        g(f"s_cmp_lt_u32 s{sSeg}, 64"); g(f"s_cselect_b32 s{sA}, s{sA}, {OOB}")
        g("s_nop 7")
        for a in range(4):
            for b in range(4):
                g(f"s_add_u32 s3, s{sA}, {(8*a+b)*2560}")
                g(f"buffer_store_dword v{C+4*a+b}, v{vSt}, {WS}, s3 offen sc1")
    def sig(layer, sS):
        l=g.uniq("sg")
        g(f"s_cmp_lg_u32 s{sW}, 1"); g(f"s_cbranch_scc1 {l}")
        g(f"s_cmp_ge_u32 s{sS}, 64"); g(f"s_cbranch_scc1 {l}")
        g(f"s_lshl_b32 s3, s{sS}, 2"); g(f"s_add_u32 s3, s3, {CPB+256*layer}")
        signal(g, vT, vSig, 3, "lo32")
        g.label(l)
    sNx,sPv=62,63
    def poll(sT):
        g(f"s_cmp_lt_u32 s{sT}, 64"); g("s_cselect_b32 s3, 4, 0"); g(f"v_writelane_b32 v{vNeed}, s3, 0")
        g(f"s_cmp_ge_u32 s{sT}, {WL}"); g("s_cselect_b32 s3, 4, 0"); g(f"v_writelane_b32 v{vNeed}, s3, 1")
        g(f"s_lshl_b32 s{sA}, s{sT}, 2")
        g(f"s_cmp_lg_u32 s{sW}, 0"); g(f"s_cselect_b32 s3, {OOB}, s{sA}")
        g(f"v_mov_b32 v{vPl}, 0")
        g("s_mov_b64 exec, 3")
        g(f"buffer_atomic_add v{vPl}, v{vFa}, {WS}, s3 offen sc0")
        g("s_mov_b64 exec, -1")
    g.label(f"L_{N}_loop")
    poll(sT)
    g("s_waitcnt vmcnt(1)"); g("s_barrier")
    sig(1,sP1)
    g(f"s_cmp_ge_u32 s{sT}, {64+WL}"); g("s_cbranch_scc1 L_bail")
    lw=g.uniq("w")
    g(f"s_cmp_lg_u32 s{sW}, 0"); g(f"s_cbranch_scc1 {lw}")
    g("s_waitcnt vmcnt(0)")
    g(f"v_cmp_gt_u32 vcc, v{vNeed}, v{vPl}"); g(f"s_cbranch_vccz {lw}")
    wait_cnt(g, 12, vFa, f"s{sA}", f"v{vNeed}", mask="3", sleep=0, v2=13)
    g.label(lw)
    g("s_barrier")
    trace(g,sT,0,vT)
    g(f"s_sub_u32 s{sP1}, s{sT}, {WL}")
    lt=g.uniq("tail"); le=g.uniq("e")
    g(f"s_cmp_ge_u32 s{sT}, 64"); g(f"s_cbranch_scc1 {lt}")
    dma(0,sT)
    g(f"s_mov_b32 s{sSeg}, s{sT}")
    compute(0,True,{0:lambda: trace(g,sT,4,vT),31:lambda: trace(g,sT,5,vT)},extra=dma(1,sP1,True))
    g.label(f"L_{N}_mid")
    trace(g,sT,3,vT)
    g(f"s_add_u32 s{sNx}, s{sT}, 1")
    poll(sNx)
    g("s_waitcnt vmcnt(17)"); g("s_barrier")
    g(f"s_mov_b32 s{sSeg}, s{sP1}")
    def h_sig():
        l=g.uniq("hs")
        g("s_waitcnt vmcnt(0)")
        g(f"s_cmp_lg_u32 s{sW}, 0"); g(f"s_cbranch_scc1 {l}")
        g(f"v_cmp_gt_u32 vcc, v{vNeed}, v{vPl}"); g("s_nop 1"); g(f"v_mov_b32 v{vT}, vcc_lo"); g(f"ds_write_b32 v{vLf}, v{vT}"); g("s_waitcnt lgkmcnt(0)")
        g.label(l)
        g("s_barrier")
        g(f"ds_read_b32 v{vPl}, v{vLf}")
        sig(0,sT)
        trace(g,sT,1,vT)
        g("s_waitcnt lgkmcnt(0)"); g(f"v_readfirstlane_b32 s3, v{vPl}"); g("s_nop 3")
        g("s_cmp_eq_u32 s3, 0"); g(f"s_cselect_b32 s{sNx}, s{sNx}, 64")
        dma(0,sNx,True)
    KS=OPT.get("wo_sig",16)
    compute(1,False,{KS:h_sig},extra=dma(0,None,True),every=(32-KS)//8,x0=KS)
    g(f"s_cmp_ge_u32 s{sNx}, 64"); g(f"s_cbranch_scc1 {le}")
    trace(g,sT,2,vT)
    tflush(g,sT,100)
    g(f"s_mov_b32 s{sT}, s{sNx}"); g(f"s_mov_b32 s{sPv}, s{sP1}"); g(f"s_sub_u32 s{sP1}, s{sT}, {WL}"); g(f"s_mov_b32 s{sSeg}, s{sT}")
    g(f"s_waitcnt vmcnt({18 if TRACE[0] else 16})"); g("s_barrier")
    trace(g,sT,0,vT); trace(g,sT,4,vT)
    def h_s1():
        g("s_waitcnt vmcnt(6)"); g("s_barrier")
        sig(1,sPv)
    compute(0,False,{16:h_s1},extra=dma(1,sP1,True))
    g(f"s_branch L_{N}_mid")
    g.label(lt)
    dma(1,sP1)
    g(f"s_mov_b32 s{sSeg}, s{sP1}")
    compute(1,True)
    g.label(le)
    trace(g,sT,2,vT)
    tflush(g,sT,100)
    g(f"s_add_u32 s{sT}, s{sT}, 1")
    g(f"s_branch L_{N}_loop")

def wsum(g, v, t):
    for d in ("quad_perm:[1,0,3,2]","quad_perm:[2,3,0,1]","row_half_mirror","row_mirror"):
        g("s_nop 1")
        g(f"v_add_f32_dpp v{v}, v{v}, v{v} {d} row_mask:0xf bank_mask:0xf")
    xsum4(g,v,t,"v_add_f32")

def rnd1(g, v):
    g(f"v_cvt_pk_bf16_f32 v{v}, v{v}, v{v}")
    g(f"v_and_b32 v{v}, 0xffff0000, v{v}")

def layernorm(g, X, Y, t0,t1,t2, sInv, sEps, packed=None, mim=True):
    assert t1==t0+1 and t0%2==0
    PP=lambda r: f"v[{r}:{r+1}]"
    g(f"v_readfirstlane_b32 s3, v{X}")
    g("s_nop 1")
    for i in range(8): g(f"v_subrev_f32 v{Y+i}, s3, v{X+i}")
    for i in range(8,12): g(f"v_mov_b32 v{Y+i}, 0")
    g("s_mov_b32 exec_hi, 0")
    for i in range(8,12): g(f"v_subrev_f32 v{Y+i}, s3, v{X+i}")
    g("s_mov_b32 exec_hi, -1")
    g(f"v_pk_mul_f32 {PP(t0)}, {PP(Y)}, {PP(Y)}")
    for i in range(2,12,2): g(f"v_pk_fma_f32 {PP(t0)}, {PP(Y+i)}, {PP(Y+i)}, {PP(t0)}")
    for i in range(2,12,2): g(f"v_pk_add_f32 {PP(Y)}, {PP(Y)}, {PP(Y+i)}")
    g(f"v_add_f32 v{t1}, v{t0}, v{t1}"); g(f"v_add_f32 v{t0}, v{Y}, v{Y+1}")
    for d in ("quad_perm:[1,0,3,2]","quad_perm:[2,3,0,1]","row_half_mirror","row_mirror"):
        g("s_nop 0")
        g(f"v_add_f32_dpp v{t1}, v{t1}, v{t1} {d} row_mask:0xf bank_mask:0xf")
        g(f"v_add_f32_dpp v{t0}, v{t0}, v{t0} {d} row_mask:0xf bank_mask:0xf")
    for sw in ("v_permlane16_swap_b32","v_permlane32_swap_b32"):
        g(f"v_mov_b32 v{Y+1}, v{t1}"); g(f"v_mov_b32 v{Y}, v{t0}"); g("s_nop 0")
        g(f"{sw} v{t1}, v{Y+1}"); g(f"{sw} v{t0}, v{Y}")
        g(f"v_pk_add_f32 {PP(t0)}, {PP(t0)}, {PP(Y)}")
    g(f"v_mul_f32 v{t0}, s{sInv}, v{t0}"); g(f"v_mul_f32 v{t1}, s{sInv}, v{t1}")
    g(f"v_fma_f32 v{t1}, -v{t0}, v{t0}, v{t1}"); g(f"v_max_f32 v{t1}, 0, v{t1}")
    g(f"v_add_f32 v{t0}, s3, v{t0}")
    g(f"v_cvt_pk_bf16_f32 v{t2}, v{t0}, v{t1}"); g(f"v_lshlrev_b32 v{t0}, 16, v{t2}"); g(f"v_and_b32 v{t1}, 0xffff0000, v{t2}")
    g(f"v_add_f32 v{t1}, s{sEps}, v{t1}"); rnd1(g,t1)
    g(f"v_sqrt_f32 v{t1}, v{t1}"); g("s_nop 0")
    for i in range(0,12,2): g(f"v_pk_add_f32 {PP(Y+i)}, {PP(X+i)}, {PP(t0)} op_sel_hi:[1,0] neg_lo:[0,1] neg_hi:[0,1]")
    rnd1(g,t1)
    g(f"v_rcp_f32 v{t1}, v{t1}")
    if mim: rnd_pairs(g,[Y+i for i in range(12)],t2)
    else: g("s_nop 0")
    for i in range(0,12,2): g(f"v_pk_mul_f32 {PP(Y+i)}, {PP(Y+i)}, {PP(t0)} op_sel:[0,1] op_sel_hi:[1,1]")
    if packed is not None: pack6(g,packed,Y)
    elif mim: rnd_pairs(g,[Y+i for i in range(12)],t2)

def unpack6(g, D, Sx):
    for i in range(6):
        g(f"v_lshlrev_b32 v{D+2*i}, 16, v{Sx+i}")
        g(f"v_and_b32 v{D+2*i+1}, 0xffff0000, v{Sx+i}")
def pack6(g, D, Sx):
    for i in range(6): g(f"v_cvt_pk_bf16_f32 v{D+i}, v{Sx+2*i}, v{Sx+2*i+1}")

def xn_addr(g, vX, vT, rowexpr_s):
    g(f"v_lshrrev_b32 v{vX}, 3, v0"); g(f"v_lshlrev_b32 v{vX}, 2, v{vX}")
    g(f"v_and_b32 v{vT}, 3, v0"); g(f"v_add_u32 v{vX}, v{vX}, v{vT}")
    g(f"v_xor_b32 v{vX}, s{rowexpr_s}, v{vX}")
    g(f"v_lshlrev_b32 v{vX}, 4, v{vX}")
    g(f"v_and_b32 v{vT}, 4, v0"); g(f"v_lshl_add_u32 v{vX}, v{vT}, 1, v{vX}")

def t4(g):
    N="t4"
    sR,sLam,sS,sA,sB,sInv,sEps,sNeed,sRow=52,53,54,55,56,57,58,59,60
    vL16,vL8,vT,vXa,vFa,vL16c,vL8c,vXc=1,2,3,4,5,6,7,8
    t0,t1,t2=10,11,9
    vX,vY,vN,vA,vPk,vFl=12,24,36,48,60,68
    vP=80
    vYa,vPg=72,73
    import pre
    g.label(f"L_{N}")
    g(f"s_lshr_b32 s{sLam}, s{sW}, 1")
    g(f"s_and_b32 s{sS}, s{sW}, 1")
    g(f"v_lshlrev_b32 v{vL16}, 4, v0")
    g(f"v_mov_b32 v{vYa}, 0"); g(f"s_lshl_b32 s3, s{sW}, 2"); g(f"s_add_u32 s3, s3, {L_FLAG}"); g(f"v_mov_b32 v{vPg}, s3")
    g(f"ds_write_b32 v{vPg}, v{vYa}")
    def yload(hi, sPart, n):
        g(f"s_mul_i32 s{sA}, s{sR}, 40960"); g(f"s_mul_i32 s{sB}, s{sPart}, {n*1024}"); g(f"s_add_u32 s{sA}, s{sA}, s{sB}"); g(f"s_add_u32 s{sA}, s{sA}, {YT+hi*32*40960}")
        for i in range(n//2):
            g(f"s_add_u32 m0, s{sB}, {hi*40960+2048*i}"); g(f"s_add_u32 s3, s{sA}, {2048*i}")
            for e in range(2): g(f"buffer_load_dwordx4 v{vL16}, {WS}, s3 offen offset:{1024*e} sc1 lds")
        g("s_waitcnt vmcnt(0) lgkmcnt(0)")
    pre.wait_wg(g,*pre.BY1,vX)
    yload(0,sW,10)
    g("s_barrier")
    tl(g,TRACE[0],DBG3+16384,101,1)
    le0=g.uniq("e0")
    g(f"s_cmp_eq_u32 s{sLam}, 0"); g(f"s_cbranch_scc1 {le0}")
    pre.t4_late(g,sR)
    g(f"v_lshlrev_b32 v{vL16}, 4, v0")
    yload(1,sS,20)
    g(f"s_lshl_b32 s3, s{sW}, 2"); g(f"s_add_u32 s3, s3, {L_FLAG}"); g(f"v_mov_b32 v{vPg}, s3"); g(f"v_mov_b32 v{vYa}, 1")
    g(f"ds_write_b32 v{vPg}, v{vYa}")
    tl(g,TRACE[0],DBG3+16384,101,2)
    g.label(le0)
    g(f"s_lshl_b32 s3, s{sS}, 2"); g(f"s_add_u32 s3, s3, {L_FLAG}"); g(f"v_mov_b32 v{vPg}, s3")
    srd(g, 8, 16, 2048*1280)
    srd(g, 12, 42, 2048*1280)
    g(f"v_lshlrev_b32 v{vL16}, 4, v0"); g(f"v_lshlrev_b32 v{vL8}, 3, v0")
    g(f"v_cmp_lt_u32 vcc, 31, v0"); g(f"v_mov_b32 v{vT}, {OOB}"); g("s_nop 1")
    g(f"v_cndmask_b32 v{vL16c}, v{vL16}, v{vT}, vcc"); g(f"v_cndmask_b32 v{vL8c}, v{vL8}, v{vT}, vcc")
    g(f"s_and_b32 s3, s{sR}, 15")
    xn_addr(g, vXa, t0, 3)
    g(f"v_cndmask_b32 v{vXc}, v{vXa}, v{vT}, vcc")
    g(f"s_lshl_b32 s3, s{sR}, 9"); g(f"s_lshl_b32 s{sA}, s{sLam}, 8"); g(f"s_add_u32 s3, s3, s{sA}"); g(f"s_add_u32 s3, s3, {CPB}"); g(f"v_mul_u32_u24 v{vFa}, {CPBS}, v0"); g(f"v_add_u32 v{vFa}, s3, v{vFa}"); g("s_sub_u32 s3, s3, 4"); g(f"v_writelane_b32 v{vFa}, s3, 4")
    g(f"v_lshlrev_b32 v{vFl}, 8, v0")
    g(f"s_mov_b32 s{sInv}, {hex(f32bits(1/640))}"); g(f"s_mov_b32 s{sEps}, {hex(f32bits(1e-5))}")
    g.label(f"L_{N}_loop")
    g(f"s_lshl_b32 s{sRow}, s{sS}, 5"); g(f"s_add_u32 s{sRow}, s{sRow}, s{sR}"); g(f"s_mul_i32 s{sRow}, s{sRow}, 1280")
    g(f"s_cmp_eq_u32 s{sLam}, 0"); g(f"s_cselect_b32 s3, s{sRow}, {OOB}")
    for i in range(3): g(f"buffer_load_dwordx2 v[{vA+2*i}:{vA+2*i+1}], v{vL8 if i<2 else vL8c}, {WT}, s3 offen offset:{512*i}{OPT.get('xnt','')}")
    ly=g.uniq("yh"); lyd=g.uniq("yhd")
    g(f"s_and_b32 s3, s{sS}, 62"); g(f"s_cmp_lg_u32 s3, 32"); g(f"s_cbranch_scc1 {lyd}")
    g(f"v_mov_b32 v{vT}, {L_FLAG+8}"); g(f"s_mov_b32 s{sTO}, 0")
    g.label(ly)
    g(f"ds_read_b64 v[{vY}:{vY+1}], v{vT}"); g("s_waitcnt lgkmcnt(0)")
    g(f"v_and_b32 v{vY}, v{vY}, v{vY+1}"); g(f"v_cmp_eq_u32 vcc, 0, v{vY}"); g(f"s_cbranch_vccz {lyd}")
    g("s_sleep 8")
    timeout(g, ly)
    g.label(lyd)
    g(f"s_and_b32 s3, s{sS}, 7"); g("s_lshl_b32 s3, s3, 3"); g(f"s_bfe_u32 s{sA}, s{sS}, 0x20003"); g(f"s_lshl_b32 s{sA}, s{sA}, 1"); g(f"s_add_u32 s3, s3, s{sA}")
    g(f"s_lshr_b32 s{sA}, s{sS}, 5"); g(f"s_mul_i32 s{sA}, s{sA}, 40960"); g(f"s_add_u32 s3, s3, s{sA}")
    g(f"v_lshlrev_b32 v{vYa}, 8, v0"); g(f"v_add_u32 v{vYa}, s3, v{vYa}")
    for i in range(8): g(f"ds_read_u16 v{vY+i}, v{vYa} offset:{(i//4)*16384+(i%4)*64}")
    for i in range(4): g(f"v_mov_b32 v{vY+8+i}, 0")
    g("s_mov_b32 exec_hi, 0")
    for i in range(4): g(f"ds_read_u16 v{vY+8+i}, v{vYa} offset:{32768+i*64}")
    g("s_mov_b32 exec_hi, -1")
    g("s_waitcnt vmcnt(0) lgkmcnt(0)")
    for i in range(12): g(f"v_lshlrev_b32 v{vY+i}, 16, v{vY+i}")
    unpack6(g,vX,vA)
    g(f"s_lshl_b32 s{sA}, s{sS}, 2")
    lp=g.uniq("tw"); ld=g.uniq("twd"); lf=g.uniq("twf")
    g(f"s_mov_b32 s{sTO}, 0"); g("s_mov_b64 exec, 31")
    g.label(lp)
    g(f"v_mov_b32 v{vT}, 0")
    g(f"buffer_atomic_add v{vT}, v{vFa}, {WS}, s{sA} offen sc0")
    g("s_waitcnt vmcnt(0)")
    g(f"v_cmp_gt_u32 vcc, 10, v{vT}")
    g("s_and_b32 s3, vcc_lo, 15"); g(f"s_cbranch_scc0 {ld}")
    g("s_bitcmp0_b32 vcc_lo, 4"); g(f"s_cbranch_scc1 {lf}")
    g(f"s_cmp_eq_u32 s{sS}, 0"); g(f"s_cbranch_scc1 {lf}")
    g(f"s_sleep {OPT.get('t4_sleep',24)}")
    g.label(lf)
    g(f"s_sleep {OPT.get('t4_sleep2',1)}")
    timeout(g, lp)
    g.label(ld)
    g("s_mov_b64 exec, -1")
    if OPT.get("t4_dly"): g(f"s_sleep {OPT['t4_dly']}")
    trace(g,sS,0,t0)
    g(f"s_lshl_b32 s{sA}, s{sLam}, 6"); g(f"s_add_u32 s{sA}, s{sA}, s{sS}"); g(f"s_mul_i32 s{sA}, s{sA}, {8*81920}")
    g(f"s_mul_i32 s3, s{sR}, 2560"); g(f"s_add_u32 s{sA}, s{sA}, s3"); g(f"s_add_u32 s{sA}, s{sA}, {PB}")
    for p in range(8):
        for i in range(3): g(f"buffer_load_dwordx4 {q4('v',vP+12*p+4*i)}, v{vL16 if i<2 else vL16c}, {WS}, s{sA} offen offset:{1024*i} sc1{OPT.get('nt','')}")
        g(f"s_add_u32 s{sA}, s{sA}, 81920")
    l0=g.uniq("l0")
    g(f"s_and_b32 s{sB}, s{sS}, 31"); g(f"s_mul_i32 s{sB}, s{sB}, 1536"); g(f"s_add_u32 s{sB}, s{sB}, 81920")
    g(f"v_add_u32 v{vT}, s{sB}, v{vL8}")
    g(f"s_cmp_eq_u32 s{sLam}, 0"); g(f"s_cbranch_scc1 {l0}")
    for i in range(3): g(f"ds_read_b64 v[{vA+2*i}:{vA+2*i+1}], v{vT} offset:{512*i}")
    g("s_waitcnt lgkmcnt(0)")
    unpack6(g,vX,vA)
    g(f"s_add_u32 s3, s{sS}, 1"); g(f"v_mov_b32 v{t0}, s3"); g(f"ds_write_b32 v{vPg}, v{t0}")
    g.label(l0)
    for p in range(1,8):
        g(f"s_waitcnt vmcnt({21-3*p})")
        for i in range(0,12,2): g(f"v_pk_add_f32 v[{vP+i}:{vP+i+1}], v[{vP+i}:{vP+i+1}], v[{vP+12*p+i}:{vP+12*p+i+1}]")
    trace(g,sS,1,t0)
    MIM=OPT.get("mim",1)
    if MIM: rnd_pairs(g,[vP+i for i in range(12)],t2)
    for i in range(0,12,2): g(f"v_pk_add_f32 v[{vX+i}:{vX+i+1}], v[{vX+i}:{vX+i+1}], v[{vP+i}:{vP+i+1}]")
    rnd_pairs(g,[vX+i for i in range(12)],t2)
    layernorm(g,vX,vN,t0,t1,t2,sInv,sEps,mim=MIM)
    for i in range(0,12,2): g(f"v_pk_mul_f32 v[{vN+i}:{vN+i+1}], v[{vN+i}:{vN+i+1}], v[{vY+i}:{vY+i+1}]")
    if MIM: rnd_pairs(g,[vN+i for i in range(12)],t2)
    for i in range(0,12,2): g(f"v_pk_add_f32 v[{vX+i}:{vX+i+1}], v[{vX+i}:{vX+i+1}], v[{vN+i}:{vN+i+1}]")
    pack6(g,vPk,vX)
    l1=g.uniq("l1"); le=g.uniq("le")
    g(f"s_cmp_lg_u32 s{sLam}, 0"); g(f"s_cbranch_scc1 {l1}")
    lg=g.uniq("rg"); lgd=g.uniq("rgd")
    g(f"s_cmp_lt_u32 s{sS}, 32"); g(f"s_cbranch_scc1 {lgd}")
    g(f"s_sub_u32 s{sA}, s{sS}, 31"); g(f"s_mov_b32 s{sTO}, 0")
    g.label(lg)
    g(f"ds_read_b32 v{t0}, v{vPg}"); g("s_waitcnt lgkmcnt(0)")
    g(f"v_cmp_gt_u32 vcc, s{sA}, v{t0}"); g(f"s_cbranch_vccz {lgd}")
    g("s_sleep 8")
    timeout(g, lg)
    g.label(lgd)
    for i in range(3): g(f"ds_write_b64 v{vT}, v[{vPk+2*i}:{vPk+2*i+1}] offset:{512*i}")
    unpack6(g,vX,vPk)
    g("s_nop 0")
    layernorm(g,vX,vN,t0,t1,t2,sInv,sEps,packed=vA,mim=MIM)
    g(f"s_add_u32 s3, s{sRow}, {XN+64*40960}")
    for i in range(3): g(f"buffer_store_dwordx2 v[{vA+2*i}:{vA+2*i+1}], v{vXa if i<2 else vXc}, {WS}, s3 offen offset:{512*i} sc1")
    trace(g,sS,2,t0)
    g("s_waitcnt vmcnt(0) lgkmcnt(0)")
    trace(g,sS,3,t0)
    g(f"s_and_b32 s{sA}, s{sR}, 3"); g(f"s_mul_i32 s{sA}, s{sA}, {CXNS}")
    g(f"s_lshl_b32 s3, s{sS}, 2"); g(f"s_add_u32 s3, s3, s{sA}"); g(f"s_add_u32 s3, s3, {CXN}")
    signal(g, vT, vFl, 3, "-1")
    g(f"s_add_u32 s3, s3, {64*256}")
    signal(g, vT, vFl, 3, "lo32")
    g(f"s_branch {le}")
    g.label(l1)
    for i in range(3): g(f"buffer_store_dwordx2 v[{vPk+2*i}:{vPk+2*i+1}], v{vL8 if i<2 else vL8c}, {W2}, s{sRow} offen offset:{512*i}{OPT.get('nt','')}")
    g("s_waitcnt vmcnt(0)")
    g.label(le)
    tflush(g,sS,180)
    g(f"s_add_u32 s{sS}, s{sS}, 2")
    g(f"s_cmp_lt_u32 s{sS}, 64"); g(f"s_cbranch_scc1 L_{N}_loop")
    g(f"s_cmp_lg_u32 s{sW}, 3"); g("s_cbranch_scc1 L_bail")
    tl(g,TRACE[0],DBG3+16384,101,3)
    g("s_endpgm")
```

```python
from common import *
from emit import E
SM="v_smfmac_f32_16x16x64_bf16"
MF16="v_mfma_f32_16x16x16_bf16"
sH,sLam,sT,sTag,sC1=52,53,54,55,56
sMr,sMw,sMl,sPCw,sKV,sEX,sSTb,sCQ,sAP,sA,sB,sMo=57,58,59,60,61,62,63,12,13,14,15,16
sPCr=64
mB0,mB1=68,70
mSel=72
sSlow=80
mP,mSt=82,84
STP,ACC=18,86
vIdx,vL16,vW1,vW2,vTW,vL8,vOW,vT=0,1,2,3,4,5,6,7
B=[8+8*i for i in range(7)]
L_MEM,L_SCR,L_MP=0,10240,14336
W1,W2=65536,114688
OWN=[[0,1],[2,3],[4,5,8],[6,7,9]]
def v4(a): return f"v[{a}:{a+3}]"
def v2(a): return f"v[{a}:{a+1}]"
def lds(off):
    if off<65536: return vL16,off
    if off<W1+65536 and off<W2: return vW1,off-W1
    return vW2,off-W2
ZOFF=163840-W2

class Plan:
    def __init__(p,w,opt):
        p.w=w; own=OWN[w]
        rest=[t for t in range(10) if t not in own]
        p.order=own+rest
        o=p.order; nh=opt.get("nh",4)
        qk=[('k',o[0],0),('k',o[0],1),('k',o[1],0),('k',o[1],1),('q',o[0],0),('q',o[1],0),('q',o[0],1),('q',o[1],1)]
        p.slot={}
        for i,k in enumerate(opt.get("hk","SLLS")): p.slot[i]=(3+i,k)
        Lp=opt.get("qkL",[8,11,14,17,20,23,26,29,32,35]); Sp=opt.get("qkS",{27:6,39:5})
        Sp={int(k):v for k,v in Sp.items()}
        for n,i in enumerate(Lp): p.slot[i]=(3+(n&1),'L')
        for i,b in Sp.items(): p.slot[i]=(b,'S')
        for s in range(2,10):
            kp=[x for x in range(4) if 4*s+x in p.slot]; assert len(kp)<=2
            for x in (3,2,1,0):
                if len(kp)<2 and x not in kp: kp.append(x)
            kp.sort(); ku=qu=0
            for x in range(4):
                if x in kp: qk.append(('k',o[s],ku)); ku+=1
                else: qk.append(('q',o[s],qu)); qu+=1
        p.qk=qk
        p.vord=[o[8],o[9]]+[t for t in range(10) if t not in (o[8],o[9])]
        p.vs=[('v',t,u) for t in p.vord for u in range(2)]
        p.vslot={i:(3,k) for i,k in zip(opt.get("vL",[2,8]),opt.get("vk","LL"))}
        ks=[w]+[k for k in range(4) if k!=w]
        p.wo=[('o',dt,w) for dt in range(5)]+[('o',dt,k) for dt in range(5) for k in ks[1:]]
        p.oslot={i:(6 if n%2==0 else 2,opt.get("ok","SSLLLL")[n]) for n,i in enumerate(opt.get("oL",[3,4,9,10,15,16]))}
        p.loc={}
        for seq,sl in ((p.qk,p.slot),(p.vs,p.vslot),(p.wo,p.oslot)):
            for i,f in enumerate(seq): p.loc[f]=sl[i][1] if i in sl else 'R'
        n={k:sum(1 for x in p.loc.values() if x==k) for k in "RLS"}
        assert n['R']==56 and n['L']==18 and n['S']==6, n
        p.home={}; p.lofs={}; p.sidx={}

def init(e,p,opt):
    w=p.w
    vD,vP,vO,vX=8,12,14,16
    TMP=[32,40,48,56]
    fl_voff(e,vD,vT,1280,256); fl_voff(e,vD+2,vT,8192,256)
    def dma(sg):
        m,i=divmod(sg,5)
        if i==0:
            b=[26,24,22,20][m]; e(f"s_mov_b32 s8, s{b}"); e(f"s_and_b32 s9, s{b+1}, 0xffff"); e(f"s_mov_b32 s10, {640*8192}")
        if m==0: e(f"s_mul_i32 s{sA}, s{sH}, {128*1280}"); e(f"s_add_u32 s{sA}, s{sA}, {32*w*1280+256*i}"); st=4*1280
        else: e(f"s_lshl_b32 s{sA}, s{sH}, 8"); e(f"s_add_u32 s{sA}, s{sA}, {(128*i+32*w)*8192}"); st=4*8192
        for j in range(8):
            e(f"s_mov_b32 m0, {(sg%5)*32768+w*8192+j*1024}")
            e(f"buffer_load_dwordx4 v{vD+(2 if m else 0)+(j>>2)}, {WT}, s{sA} offen lds",tag=("dma",sg))
            if j<7: e(f"s_add_u32 s{sA}, s{sA}, {st}")
    for sg in range(5): dma(sg)
    e(f"v_lshrrev_b32 v20, 4, v0"); e("v_bfe_u32 v21, v0, 2, 1"); e("v_bfe_u32 v22, v0, 3, 1"); e("v_and_b32 v23, 1, v20"); e("v_lshrrev_b32 v24, 1, v20")
    e("v_and_b32 v25, 3, v0"); e("v_lshlrev_b32 v25, 3, v25")
    e("v_lshl_add_u32 v26, v22, 1, v23"); e("v_lshl_add_u32 v27, v21, 2, v26"); e("v_lshl_add_u32 v26, v24, 2, v26"); e("v_lshl_add_u32 v26, v21, 4, v26")
    e(f"v_xor_b32 v27, {2*w}, v27"); e("v_lshl_add_u32 v27, v27, 5, v25"); e(f"v_lshl_add_u32 v{vP}, v26, 8, v27")
    e("v_lshl_add_u32 v26, v24, 2, v21"); e("v_lshl_add_u32 v26, v23, 4, v26"); e("v_lshl_add_u32 v27, v23, 2, v21"); e("v_lshl_add_u32 v27, v22, 1, v27")
    e("v_lshl_add_u32 v27, v27, 5, v25"); e(f"v_lshl_add_u32 v{vO}, v26, 8, v27")
    e(f"v_lshlrev_b32 v{vL16}, 4, v0"); e(f"v_add_u32 v{vW1}, {W1}, v{vL16}"); e(f"v_add_u32 v{vW2}, {W2}, v{vL16}")
    pool=[('a',8*i) for i in range(32)]+[('v',64+8*i) for i in range(24)]
    parked=[]; tn=[0]
    def rd(f,dst,slot):
        k,b=dst
        if f[0]=='o':
            T0=(4*(f[1]//2)+f[1]%2) if f[1]<4 else 4*(w//2)+w%2
            e(f"v_xor_b32 v{vX}, {T0*32}, v{vO}"); e(f"v_add_u32 v{vX}, {slot*32768}, v{vX}"); e(f"v_xor_b32 v{vX+1}, 64, v{vX}")
            for x,off in enumerate((0,2,8,10)): e(f"ds_read_b64_tr_b16 {k}[{b+2*x}:{b+2*x+1}], v{vX+(x&1)} offset:{(32*f[2]+off)*256}")
        else:
            e(f"v_xor_b32 v{vX}, {f[2]*32}, v{vP}"); e(f"v_add_u32 v{vX}, {slot*32768}, v{vX}")
            for x,off in enumerate((0,32,8,40)): e(f"ds_read_b64_tr_b16 {k}[{b+2*x}:{b+2*x+1}], v{vX} offset:{(64*(f[1]%2)+off)*256}")
    for sg in range(20):
        m,i=divmod(sg,5); slot=sg%5
        e.wait(("dma",sg)); e("s_barrier")
        if m==0: fr=[('o',dt,k) for dt in range(4) for k in range(4)] if i==w else [('o',4,k) for k in range(4)] if i==4 else []
        else: fr=[("ovkq"[m],2*i+tt,u) for tt in range(2) for u in range(2)]
        late=[]
        for f in fr:
            if p.loc[f]=='S':
                t=TMP[tn[0]%4]; tn[0]+=1; rd(f,('v',t),slot); p.sidx[f]=len(p.sidx)
                e(f"s_add_u32 s3, s{sSTb}, {p.sidx[f]*2048}")
                for h in range(2): e(f"buffer_store_dwordx4 {v4(t+4*h)}, v{vL16}, {WS}, s3 offen offset:{1024*h}")
            elif pool:
                p.home[f]=pool.pop(0); rd(f,p.home[f],slot)
                if p.loc[f]=='L': parked.append(f)
            else:
                t=TMP[len(late)]; rd(f,('v',t),slot); late.append((f,t))
        e.waitall(vm=False); e("s_barrier")
        if sg+5<20: dma(sg+5)
        else:
            for j in range(2 if slot==0 else 4):
                f=parked.pop(); k,b=p.home.pop(f); pool.append((k,b))
                p.lofs[f]=16384+w*4096+j*2048 if slot==0 else slot*32768+w*8192+j*2048
                for h in range(2):
                    va,o=lds(p.lofs[f]+1024*h); e(f"ds_write_b128 v{va}, {k}[{b+4*h}:{b+4*h+3}] offset:{o}")
            e.waitall(vm=False)
            for f,t in late:
                k,b=p.home[f]=pool.pop(0)
                for x in range(8): e(f"v_accvgpr_write_b32 a{b+x}, v{t+x}" if k=='a' else f"v_mov_b32 v{b+x}, v{t+x}")
    assert not pool and not parked

def red_addr(e,w,vA,vS,t):
    sh=3 if w<2 else 2
    e(f"v_lshrrev_b32 v{vA}, {4+sh}, v{vL16}"); e(f"v_mul_u32_u24 v{vA}, 10240, v{vA}"); e(f"v_and_b32 v{t}, {(16<<sh)-16}, v{vL16}"); e(f"v_add_u32 v{vA}, v{vA}, v{t}")
    e(f"v_and_b32 v{vS}, 32, v{vL16}"); e(f"v_and_b32 v{t}, 64, v{vL16}"); e(f"v_lshl_add_u32 v{vS}, v{t}, 2, v{vS}")
    e(f"v_bfe_u32 v{t}, v{vL16}, 8, 1"); e(f"v_lshl_add_u32 v{vS}, v{t}, 4, v{vS}"); e(f"v_and_b32 v{t}, 8, v{vL8}"); e(f"v_add_u32 v{vS}, v{vS}, v{t}")

def loop(g,e,p,opt,LS,LN,cold):
    w=p.w; diag=opt.get("diag"); PTS=opt.get("pts",["top","mem","b1","qke","sc","b2","sum","pv","b3","pcst","red","mst"])
    def stamp(n):
        if diag and n in PTS: i=PTS.index(n); e(f"s_mem{'real' if diag>1 else ''}time s[{STP+2*i}:{STP+2*i+1}]")
    def dly(k):
        n=opt.get(k+str(w),opt.get(k,0)); e.nop(n)
    def retry(back,pre=(),cnt=None):
        l=g.uniq("rt"); e(f"s_cbranch_vccnz {l}")
        def f():
            g.label(l)
            if diag and cnt is not None: g(f"s_add_u32 s{cnt}, s{cnt}, 1")
            for x in pre: g(x)
            timeout(g,back)
        cold.append(f)
    def Bop(f,sl,i):
        if i in sl: b=B[sl[i][0]]; return f"v[{b}:{b+7}]"
        k,b=p.home[f]; return f"{k}[{b}:{b+7}]"
    def fill(f,blk):
        if f=='Kx':
            e(f"s_add_u32 s3, s{sKV}, 4096")
            e(f"buffer_load_dwordx4 {v4(B[blk])}, v{vL16}, {WS}, s{sKV} offen offset:{1024*w} sc1")
            e(f"buffer_load_dwordx4 {v4(B[blk]+4)}, v{vL16}, {WS}, s3 offen offset:{1024*w} sc1")
        elif f=='Vx':
            e(f"s_add_u32 s3, s{sKV}, {VO-KQ+2048*w}")
            for h in range(2): e(f"buffer_load_dwordx4 {v4(B[blk]+4*h)}, v{vL16}, {WS}, s3 offen offset:{1024*h} sc1")
            if opt.get("touch")==4 and w in (1,2):
                e(f"v_lshlrev_b32 v{vT}, 3, v{vL16}"); e(f"s_add_u32 s3, s{sKV}, {(1<<19)+(VO-KQ)*(w-1)}"); e(f"buffer_load_dword v{vT}, v{vT}, {WS}, s3 offen sc1")
        elif p.loc[f]=='L':
            for h in range(2):
                va,o=lds(p.lofs[f]+1024*h); e(f"ds_read_b128 {v4(B[blk]+4*h)}, v{va} offset:{o}")
        else:
            n=p.sidx[f]
            if n>=2: e(f"s_add_u32 s3, s{sSTb}, {(n//2)*4096}")
            for h in range(2): e(f"buffer_load_dwordx4 {v4(B[blk]+4*h)}, v{vL16}, {WS}, {'s3' if n>=2 else f's{sSTb}'} offen offset:{2048*(n&1)+1024*h}")
    def zero(r): e(f"ds_read_b128 {v4(r)}, v{vW2} offset:{ZOFF}")
    def rdA(t,r): e(f"ds_read_b128 {v4(r)}, v{vL16} offset:{L_MEM+1024*t}")
    Q={b:[] for b in range(7)}
    for seq,sl in ((p.qk,p.slot),(p.vs,p.vslot)):
        for i in sorted(sl): Q[sl[i][0]].append(seq[i])
    Q[6].append('Kx'); Q[3].append('Vx')
    first={b:Q[b].pop(0) for b in (3,4,5,6)}
    def nxt(b):
        if Q[b]: fill(Q[b].pop(0),b)
    hop_a=opt.get("hop_a",[3,4,5]); hop_b=[b for b in (3,4,5,6) if b not in hop_a]
    if LN=="f":
        for b in (3,4,5,6): fill(first[b],b)
        for r in (0,4,8,12): zero(B[0]+r)
        e.waitall()
        e(f"s_cmp_lg_u32 s{sSlow}, 0"); e(f"s_cbranch_scc1 L_ch{w}_s")
    g.raw(".p2align 6")
    e.label(f"L_ch{w}_{LN}")
    stamp("top")
    own=OWN[w]; land=[B[2],B[2]+4,B[0]+4]
    lm=g.uniq("pm"); e(f"s_mov_b32 s{sTO}, 0"); e.label(lm)
    for n,t in enumerate(own):
        if n==2: e(f"s_add_u32 s3, s{sMl}, {(t-own[0])*1024}")
        e(f"buffer_load_dwordx4 {v4(land[n])}, v{vL16}, {WS}, {'s3' if n==2 else f's{sMl}'} offen offset:{1024*n if n<2 else 0} sc1")
    for n,t in enumerate(own):
        e(f"ds_write_b128 v{vL16}, {v4(land[n])} offset:{L_MEM+1024*t}",tag="mw")
        e(f"v_max_u32 v{vT}, v{land[n]}, v{land[n]+2}" if n==0 else f"v_max3_u32 v{vT}, v{vT}, v{land[n]}, v{land[n]+2}")
    e(f"v_cmp_eq_u32 vcc, -1, v{vT}")
    retry(lm,["s_waitcnt lgkmcnt(0)"]+["s_nop 15"]*opt.get("rt_m",0),98)
    stamp("mem")
    if opt.get("touch",1)==3: e.waitall(vm=False)
    if len(own)==3: zero(land[2])
    Areg={p.order[s]:B[2]+4*(s&1) for s in range(10)}
    acc={'q':B[0],'k':B[1],'v':B[4]}
    b1=opt.get("b1",3)
    lastuse={f[1]:i for i,f in enumerate(p.qk)}
    last4=max(i for i in p.slot if p.slot[i][0]==4)
    for i,f in enumerate(p.qk):
        e(f"{SM} {v4(acc[f[0]]+4*f[2])}, {v4(Areg[f[1]])}, {Bop(f,p.slot,i)}, v{vIdx}")
        if i in p.slot and not (i<=b1 and p.slot[i][0]>=5): nxt(p.slot[i][0])
        if i==b1:
            e.wait("mw"); e("s_barrier"); stamp("b1")
            for b in (6,5): nxt(b)
        if lastuse[f[1]]==i:
            s=p.order.index(f[1])
            if s+2<10: rdA(p.order[s+2],Areg[f[1]])
        if i==last4: zero(B[4]); zero(B[4]+4)
    stamp("qke")
    ring=[B[2],B[2]+4,B[5]+4]; vi=[0]
    rdA(p.vord[2],ring[2])
    def vm(n,fl=()):
        fl=list(fl)
        for _ in range(n):
            i=vi[0]; vi[0]+=1; f=p.vs[i]; s=i//2
            e(f"{SM} {v4(B[4]+4*f[2])}, {v4(ring[s%3])}, {Bop(f,p.vslot,i)}, v{vIdx}")
            if i in p.vslot: nxt(3)
            if i&1 and s+3<10: rdA(p.vord[s+3],ring[s%3])
            if fl: e(fl.pop(0))
        for x in fl: e(x)
    G=opt.get("gaps",[0,4,3,6,7]); assert sum(G)==20
    SC=L_SCR+1024*w
    def post(a):
        for u in range(2):
            r=a+4*u
            e(f"v_add_f32 v{r}, v{r}, v{r+2}"); e(f"v_add_f32 v{r+1}, v{r+1}, v{r+3}"); e(f"v_cvt_pk_bf16_f32 v{r}, v{r}, v{r+1}")
    vm(G[0])
    qop,kop=B[0]+4,B[1]+4
    post(B[0])
    e(f"ds_write2_b32 v{vTW}, v{B[0]}, v{B[0]} offset0:0 offset1:1"); e(f"ds_write2_b32 v{vTW}, v{B[0]+4}, v{B[0]+4} offset0:128 offset1:129")
    for u in range(2): e(f"ds_read_b64_tr_b16 {v2(qop+2*u)}, v{vL8} offset:{SC+512*u}")
    post(B[1])
    e(f"ds_write2_b32 v{vTW}, v{B[1]}, v{B[1]+4} offset0:0 offset1:128")
    for u in range(2): e(f"ds_read_b64_tr_b16 {v2(kop+2*u)}, v{vL8} offset:{SC+512*u}")
    vm(G[1])
    S,D1,Sm=B[0],B[1],B[5]
    e(f"{MF} {v4(S)}, {v4(B[6])}, {v4(qop)}, 0"); e(f"{MF} {v4(D1)}, {v4(B[6]+4)}, {v4(qop)}, 0"); e(f"{MF} {v4(Sm)}, {v4(kop)}, {v4(qop)}, 0")
    stamp("sc")
    vm(G[2])
    for r in range(4): e(f"v_cndmask_b32 v{S+r}, v{S+r}, v{D1+r}, s[{mB1}:{mB1+1}]")
    e(f"ds_write_b128 v{vL16}, {v4(S)} offset:{SC}",tag="sw")
    e(f"ds_write_b64 v{vL16}, {v2(Sm)} offset:{L_MP+1024*(w>>1)+8*(w&1)}",tag="sw")
    vm(G[3])
    assert not Q[3], Q[3]
    e.wait("sw"); e("s_barrier"); stamp("b2")
    X=[B[6],B[6]+4,B[1]]
    for n,k in enumerate(x for x in range(4) if x!=w): e(f"ds_read_b128 {v4(X[n])}, v{vL16} offset:{L_SCR+1024*k}")
    Ma,Mb=B[0]+4,B[5]
    e(f"ds_read_b128 {v4(Ma)}, v{vL16} offset:{L_MP}"); e(f"ds_read_b128 {v4(Mb)}, v{vL16} offset:{L_MP+1024}")
    fl=[f"s_mov_b64 exec, s[{mB0}:{mB0+1}]\nbuffer_store_dwordx4 {v4(kop)}, v{vOW}, {WS}, s{sEX} offen offset:{512*w} sc1\ns_mov_b64 exec, -1"]
    if opt.get("noex"): fl=[]
    if w==2 and opt.get("touch",1)==1:
        fl+=[f"v_lshlrev_b32 v{vT}, 3, v{vL16}", f"s_add_u32 s3, s{sKV}, {1<<19}", f"buffer_load_dword v{vT}, {WS}, s3 offen sc1 lds\ns_add_u32 s3, s3, {VO-KQ}", f"buffer_load_dword v{vT}, {WS}, s3 offen sc1 lds"]
    flags=[f"v_mov_b32 v{vT}, 0", f"s_mov_b64 exec, 1\nbuffer_atomic_add v{vT}, off, {WS}, s{sCQ} sc0\ns_mov_b64 exec, 2\nbuffer_atomic_add v{vT}, off, {WS}, s{sAP} sc0 ;nodep\ns_mov_b64 exec, -1"]
    if opt.get("noat"): flags=[f"v_mov_b32 v{vT}, 0x64"]
    if w==3: fl+=flags
    late=[]
    if opt.get("late",1): late=fl; fl=[]
    vm(G[4],fl)
    pk=lambda d,a,b: e(f"v_pk_add_f32 {v2(d)}, {v2(a)}, {v2(b)}")
    for h in (0,2): pk(S+h,S+h,X[0]+h)
    for h in (0,2): pk(X[1]+h,X[1]+h,X[2]+h)
    pk(Ma,Ma,Ma+2); pk(Mb,Mb,Mb+2)
    for h in (0,2): pk(S+h,S+h,X[1]+h)
    pk(Sm,Ma,Mb)
    stamp("sum")
    Qo={6:[],2:[]}
    for i in sorted(p.oslot): Qo[p.oslot[i][0]].append(p.wo[i])
    Q.update(Qo)
    t0,t1,Mp,z,z1=B[5]+2,B[5]+3,B[5]+4,B[5]+6,B[5]+7
    Vm,O,Do,R=B[4],B[4]+2,B[4]+4,B[0]+4
    DP="row_mask:0xf bank_mask:0xf"
    vp=[f"v_add_f32 v{Vm}, v{Vm}, v{Vm+2}",f"v_add_f32 v{Vm+1}, v{Vm+1}, v{Vm+3}",f"v_add_f32 v{Vm+4}, v{Vm+4}, v{Vm+6}",f"v_add_f32 v{Vm+5}, v{Vm+5}, v{Vm+7}",
        f"v_cvt_pk_bf16_f32 v{Vm}, v{Vm}, v{Vm+1}",f"v_cvt_pk_bf16_f32 v{Vm+1}, v{Vm+4}, v{Vm+5}"]
    e(f"v_max3_f32 v{t0}, v{S}, v{S+1}, v{S+2}"); e(f"v_max3_f32 v{t0}, v{t0}, v{S+3}, v{Sm}"); e(f"v_max_f32 v{t0}, v{t0}, v{Sm+1}")
    e(vp[0]); e(vp[1])
    e(f"v_max_f32_dpp v{t0}, v{t0}, v{t0} quad_perm:[2,3,0,1] {DP}")
    for n,sw in enumerate(("v_permlane16_swap_b32","v_permlane32_swap_b32")):
        e(f"v_mov_b32 v{t1}, v{t0}"); e(vp[2+2*n]); e(vp[3+2*n]); e(f"{sw} v{t0}, v{t1}"); e(f"v_max_f32 v{t0}, v{t0}, v{t1}")
    e(f"v_mul_f32 v{t0}, s{sC1}, v{t0}")
    ER=[Sm,Sm+1,S,S+1,S+2,S+3]
    for r in ER: e(f"v_fma_f32 v{r}, v{r}, s{sC1}, -v{t0}")
    for n,r in enumerate(ER):
        e(f"v_exp_f32 v{r}, v{r}")
        if n==1: nxt(6)
        if n==3: nxt(2)
        if n==4:
            for x in late: e(x)
        if n==5 and w==2 and opt.get("touch",1)==2:
            e(f"v_lshlrev_b32 v{vT}, 3, v{vL16}"); e(f"s_add_u32 s3, s{sKV}, {1<<19}"); e(f"buffer_load_dword v{vT}, {WS}, s3 offen sc1 lds")
        if n==4 and not opt.get("noex"): e(f"buffer_store_dwordx2 {v2(Vm)}, v{vL8}, {WS}, s{sEX} offen offset:{2048+512*w} sc1")
    P1,P2=B[1],B[1]+4
    cm=lambda d,s_,m: e(f"v_cndmask_b32 v{d}, 0, v{s_}, s[{m}:{m+1}]")
    e(f"v_cvt_pk_bf16_f32 v{R+2}, v{Sm}, v{Sm+1}"); e(f"v_cvt_pk_bf16_f32 v{R}, v{S}, v{S+1}"); e(f"v_cvt_pk_bf16_f32 v{R+1}, v{S+2}, v{S+3}")
    cm(Mp,R+2,mB0); cm(Mp+1,R+2,mB1)
    cm(P2+2,R,mB1); cm(P2+3,R+1,mB1)
    e(f"{MF16} {v4(Do)}, {v2(Vm)}, {v2(Mp)}, 0")
    cm(P1,R,mB0); cm(P1+1,R+1,mB0)
    for h in range(2): e(f"v_mov_b32_dpp v{P1+2+h}, v{P2+2+h} quad_perm:[2,3,0,1] {DP}")
    for h in range(2): e(f"v_mov_b32_dpp v{P2+h}, v{P1+h} quad_perm:[2,3,0,1] {DP}")
    e(f"{MF} {v4(Do)}, {v4(B[3])}, {v4(P1)}, {v4(Do)}")
    e(f"v_add_f32 v{z}, v{S}, v{S+1}"); e(f"v_add_f32 v{z1}, v{Sm}, v{Sm+1}")
    e(f"{MF} {v4(Do)}, {v4(B[3]+4)}, {v4(P2)}, {v4(Do)}")
    stamp("pv")
    OA=[B[1],B[1]+4,B[3],B[3]+4,B[0]]
    e(f"v_add_f32 v{z}, v{z}, v{S+2}"); e(f"v_fma_f32 v{z1}, v{z1}, 0.5, v{S+3}"); e(f"v_add_f32 v{z}, v{z}, v{z1}")
    zero(OA[0]); zero(OA[1])
    e(f"v_add_f32_dpp v{z}, v{z}, v{z} quad_perm:[2,3,0,1] {DP}")
    e(f"v_mov_b32 v{z1}, v{z}"); zero(OA[2]); zero(OA[3]); e(f"v_permlane16_swap_b32 v{z}, v{z1}"); e(f"v_add_f32 v{z}, v{z}, v{z1}")
    e(f"v_mov_b32 v{z1}, v{z}"); zero(OA[4]); e(f"s_cmp_eq_u32 s{sT}, 63"); e(f"v_permlane32_swap_b32 v{z}, v{z1}"); e(f"v_add_f32 v{z}, v{z}, v{z1}")
    e(f"v_rcp_f32 v{z}, v{z}")
    e(f"s_cbranch_scc1 L_ch{w}_end")
    for h in (0,2):
        e(f"v_mul_f32 v{Do+h}, v{Do+h}, v{z}"); e(f"v_mul_f32 v{Do+h+1}, v{Do+h+1}, v{z}"); e(f"v_cvt_pk_bf16_f32 v{O+h//2}, v{Do+h}, v{Do+h+1}")
    e(f"ds_write_b64 v{vOW}, {v2(O)} offset:{L_MEM+512*w}",tag="ow")
    e(f"v_and_b32 v{Vm}, -9, v{vOW}")
    ks=[w]+[k for k in range(4) if k!=w]
    AO=dict(zip(ks,[B[0]+4,B[5],B[5]+4,B[4]+4]))
    for h in range(2): e(f"v_mov_b32_dpp v{AO[w]+h}, v{O+h} quad_perm:[0,1,0,1] {DP}"); e(f"v_mov_b32_dpp v{AO[w]+2+h}, v{O+h} quad_perm:[2,3,2,3] {DP}")
    b3=opt.get("b3",1)
    tagv=lambda r: f"v_and_or_b32 v{r}, v{r}, -2, s{sTag}"
    def out(dt,d):
        a=OA[dt]; return [f"v_cvt_pk_bf16_f32 v{d}, v{a}, v{a+1}",f"v_cvt_pk_bf16_f32 v{d+1}, v{a+2}, v{a+3}",tagv(d)]
    pend=[]
    for i,f in enumerate(p.wo):
        e(f"{SM} {v4(OA[f[1]])}, {v4(AO[f[2]])}, {Bop(f,p.oslot,i)}, v{vIdx}")
        if i in p.oslot: nxt(p.oslot[i][0])
        if i==b3:
            e.wait("ow"); e("s_barrier"); stamp("b3")
            for k in ks[1:]: e(f"ds_read_b128 {v4(AO[k])}, v{Vm} offset:{L_MEM+512*k}")
        if i>=10 and (i-10)%3==0:
            dt=(i-10)//3; pend+=out(dt,OA[dt&~1]+2*(dt&1))
            if dt&1: pend[-1]+=f"\nbuffer_store_dwordx4 {v4(OA[dt-1])}, v{vL16}, {WS}, s{sPCw} offen offset:{1024*(dt>>1)}{LS}"
        if pend: e(pend.pop(0))
    for x in pend: e(x)
    e(f"s_add_u32 s3, s{sPCw}, {(8+w//2-2*w)*1024}")
    for x in out(4,OA[4]): e(x)
    e(f"buffer_store_dwordx2 {v2(OA[4])}, v{vL16}, {WS}, s3 offen offset:{8*(w&1)}{LS}")
    stamp("pcst")
    for b in hop_a:
        if not opt.get("xs"): fill(first[b],b)
    e(f"s_add_u32 s{sT}, s{sT}, 1"); e(f"s_add_u32 s{sKV}, s{sKV}, {1<<19}")
    e(f"s_and_b32 s3, s{sT}, {NEX-1}"); e(f"s_cselect_b32 s3, 1, {-(NEX-1)}"); e("s_lshl_b32 s3, s3, 17"); e(f"s_add_u32 s{sEX}, s{sEX}, s3")
    e(f"s_and_b32 s3, s{sT}, 3"); e("s_cselect_b32 s3, 1, -3"); e("s_lshl_b32 s3, s3, 14"); e(f"s_add_u32 s{sMw}, s{sMr}, s3"); e(f"s_add_u32 s{sMl}, s{sMl}, s3")
    if opt.get("touch",1)==3:
        for i in range(opt.get("nsm",12)): e(f"s_buffer_load_dword s101, {WS}, s{sKV} offset:{2048*w+128*i}")
    if w<3:
        vA,vS,ac,sel=B[6],B[6]+1,B[2],B[2]+4
        tq=B[6]+4
        red_addr(e,w,vA,vS,tq)
        e(f"v_mov_b32 v{tq}, 0x3f80"); e(f"v_mov_b32 v{sel}, 0x3f800000"); e(f"v_cndmask_b32 v{tq}, v{tq}, v{sel}, s[{mP}:{mP+1}]")
        for r in range(4): cm(sel+r,tq,mSel+2*r)
        e(f"v_mov_b64 {v2(B[6]+2)}, -1")
        dly("dly_pc")
        lp=g.uniq("pp"); e(f"s_mov_b32 s{sTO}, 0"); e.label(lp)
        n=4 if w<2 else 2
        for i in range(n): e(f"buffer_load_dwordx4 {v4(B[0]+4*i)}, v{vA}, {WS}, s{sPCr+i} offen sc1")
        for i in range(n):
            d=B[0]+4*i
            e(f"{MF} {v4(ac)}, {v4(sel)}, {v4(d)}, {'0' if i==0 else v4(ac)}")
            e(f"v_bitop3_b32 v{B[6]+4+i}, v{d}, v{d+2}, s{sTag} bitop3:0x7e")
        if n==4: e(f"v_or3_b32 v{vT}, v{B[6]+4}, v{B[6]+5}, v{B[6]+6}"); e(f"v_bitop3_b32 v{vT}, v{vT}, v{B[6]+7}, 1 bitop3:0xa8")
        else: e(f"v_bitop3_b32 v{vT}, v{B[6]+4}, v{B[6]+5}, 1 bitop3:0xa8")
        e(f"v_cmp_ne_u32 vcc, 0, v{vT}")
        retry(lp,["s_nop 15"]*opt.get("rt_p",0),99)
        stamp("red")
        for rot in ((8,) if w<2 else (8,4)):
            for r in range(4): e(f"v_add_f32_dpp v{ac+r}, v{ac+r}, v{ac+r} row_ror:{rot} {DP}")
        e(f"s_mov_b64 exec, s[{mSt}:{mSt+1}]")
        e(f"v_cvt_pk_bf16_f32 v{ac}, v{ac}, v{ac+1}"); e(f"v_cvt_pk_bf16_f32 v{ac+1}, v{ac+2}, v{ac+3}")
        e(f"buffer_store_dwordx2 {v2(ac)}, v{vS}, {WS}, s{sMw} offen{LS}")
        e(f"buffer_store_dwordx2 {v2(B[6]+2)}, v{vS}, {WS}, s{sMr} offen{LS}")
        e("s_mov_b64 exec, -1")
        stamp("mst")
    else:
        lf=g.uniq("fl"); lr=g.uniq("fr"); e(f"s_mov_b32 s{sTO}, 0"); e.label(lf)
        e(f"v_readlane_b32 s{sA}, v{vT}, 0"); e(f"v_readlane_b32 s{sB}, v{vT}, 1"); e("s_nop 3")
        e(f"s_cmp_lt_u32 s{sA}, 8"); e(f"s_cbranch_scc1 {lr}")
        e(f"s_add_u32 s{sB}, s{sB}, {NEX}"); e(f"s_cmp_le_u32 s{sB}, s{sT}"); e(f"s_cbranch_scc1 {lr}")
        def f():
            g.label(lr)
            if diag: g("s_add_u32 s99, s99, 1")
            g(f"s_sleep {opt.get('fl_sleep',4)}")
            for x in flags: g(x)
            g("s_waitcnt vmcnt(0)")
            timeout(g,lf)
        cold.append(f)
        e(f"s_add_u32 s{sCQ}, s{sCQ}, 4")
        stamp("red"); dly("dly_w3"); stamp("mst")
    e(f"s_mov_b32 s{sMr}, s{sMw}"); e(f"s_xor_b32 s{sTag}, s{sTag}, 1")
    if opt.get("fb",0): e("s_barrier")
    for b in hop_b:
        if not opt.get("xs"): fill(first[b],b)
    for r in ((0,4,8,12) if len(own)==2 else (0,8,12)): zero(B[0]+r)
    if opt.get("touch",1)!=3 or diag: e.waitall(vm=False)
    if diag and diag>1:
        l=g.uniq("dg"); e(f"s_cmp_lg_u32 s{sT}, {opt.get('dstep',diag)}"); e(f"s_cbranch_scc1 {l}")
        for i in range(len(PTS)): e(f"s_mov_b32 s{ACC+i}, s{STP+2*i}")
        e.label(l)
    elif diag:
        l=g.uniq("dg"); e(f"s_sub_u32 s3, s{sT}, 9"); e("s_cmp_ge_u32 s3, 50"); e(f"s_cbranch_scc1 {l}")
        for i in range(1,len(PTS)): e(f"s_sub_u32 s3, s{STP+2*i}, s{STP}"); e(f"s_add_u32 s{ACC+i}, s{ACC+i}, s3")
        e(f"s_sub_u32 s3, s{STP}, s17"); e(f"s_add_u32 s{ACC}, s{ACC}, s3")
        e.label(l); e(f"s_mov_b32 s17, s{STP}")
    if opt.get("ldiag"):
        for tv,sr_ in ((8,18),(60,22)):
            l=g.uniq("lt"); e(f"s_cmp_lg_u32 s{sT}, {tv}"); e(f"s_cbranch_scc1 {l}")
            e(f"s_memrealtime s[{sr_}:{sr_+1}]"); e(f"s_memtime s[{sr_+2}:{sr_+3}]"); e("s_waitcnt lgkmcnt(0)"); e.label(l)
    dly("dly_mem")
    e(f"s_branch L_ch{w}_{LN}")
    e.vm=[]; e.ds=[]

def chain(g,opt,start):
    g.label("L_ch")
    if opt.get("ldiag") or opt.get("diag"): g("s_memrealtime s[96:97]"); g("s_waitcnt lgkmcnt(0)"); g("s_mov_b32 s100, s96")
    g(f"s_mov_b32 s{sH}, s{sTK}")
    g(f"s_lshl_b32 s{sA}, s{sLam}, 5"); g(f"s_add_u32 s{sA}, s{sA}, s{sH}")
    g(f"s_lshl_b32 s{sSTb}, s{sA}, 16"); g(f"s_lshl_b32 s3, s{sW}, 14"); g(f"s_add_u32 s{sSTb}, s{sSTb}, s3"); g(f"s_add_u32 s{sSTb}, s{sSTb}, {ST}")
    g(f"s_mul_i32 s{sPCw}, s{sA}, 10240"); g(f"s_lshl_b32 s3, s{sW}, 11"); g(f"s_add_u32 s{sPCw}, s{sPCw}, s3"); g(f"s_add_u32 s{sPCw}, s{sPCw}, {PC}")
    g(f"s_lshl_b32 s{sCQ}, s{sA}, 8"); g(f"s_add_u32 s{sCQ}, s{sCQ}, {CQKV}")
    g(f"s_lshl_b32 s{sAP}, s{sA}, 7"); g(f"s_add_u32 s{sAP}, s{sAP}, {APG}")
    g(f"s_mul_i32 s{sEX}, s{sLam}, {NEX*32*4096}"); g(f"s_lshl_b32 s3, s{sH}, 12"); g(f"s_add_u32 s{sEX}, s{sEX}, s3"); g(f"s_add_u32 s{sEX}, s{sEX}, {EX}")
    g(f"s_and_b32 s3, s{sH}, 1"); g("s_lshl_b32 s3, s3, 13"); g(f"s_lshl_b32 s{sKV}, s{sH}, 14"); g(f"s_add_u32 s{sKV}, s{sKV}, s3")
    g(f"s_mul_i32 s3, s{sLam}, {LST}"); g(f"s_add_u32 s{sKV}, s{sKV}, s3"); g(f"s_add_u32 s{sKV}, s{sKV}, {KQ}")
    g(f"s_mov_b32 s{sC1}, {hex(f32bits(128**-0.5*math.log2(math.e)))}"); g(f"s_mov_b32 s{sT}, 0"); g(f"s_mov_b32 s{sTag}, 1")
    for m,val in ((mB0,0x33333333),(mB1,0xcccccccc),(mSel,0x11111111),(mSel+2,0x44444444),(mSel+4,0x22222222),(mSel+6,0x88888888),(mP,0xf0f0f0f0)):
        g(f"s_mov_b32 s{m}, {hex(val)}"); g(f"s_mov_b32 s{m+1}, {hex(val)}")
    for w in range(1,4): g(f"s_cmp_eq_u32 s{sW}, {w}"); g(f"s_cbranch_scc1 L_ch{w}")
    for w in range(4):
        g.label(f"L_ch{w}")
        e=E(g); p=Plan(w,opt); cold=[]
        init(e,p,opt)
        e(f"v_lshlrev_b32 v{vL8}, 3, v0")
        e(f"v_and_b32 v{vTW}, 15, v0"); e(f"v_lshlrev_b32 v{vTW}, 5, v{vTW}"); e(f"v_lshrrev_b32 v{vT}, 4, v0"); e(f"v_lshl_add_u32 v{vTW}, v{vT}, 3, v{vTW}"); e(f"v_add_u32 v{vTW}, {L_SCR+1024*w}, v{vTW}")
        e(f"v_and_b32 v{vOW}, 0x1e0, v{vL8}"); e(f"v_and_b32 v{vT}, 1, v0"); e(f"v_lshl_add_u32 v{vOW}, v{vT}, 4, v{vOW}"); e(f"v_and_b32 v{vT}, 2, v0"); e(f"v_lshl_add_u32 v{vOW}, v{vT}, 2, v{vOW}")
        e(f"s_lshl_b32 s{sMl}, s{sLam}, 16"); e(f"s_add_u32 s{sMl}, s{sMl}, {MEM}")
        e(f"s_mul_i32 s{sB}, s{sLam}, {32*10240}"); e(f"s_add_u32 s{sB}, s{sB}, {PC}")
        if w<2:
            e(f"s_lshl_b32 s3, s{sH}, 8"); e(f"s_add_u32 s{sB}, s{sB}, s3")
            for i in range(4): e(f"s_add_u32 s{sPCr+i}, s{sB}, {128*w+81920*i}")
            e(f"s_lshr_b32 s{sA}, s{sH}, 2"); e(f"s_and_b32 s{sB}, s{sH}, 3"); e(f"s_mov_b32 s{sMo}, {2*w}")
            e(f"s_mov_b32 s{mSt}, 0x00ff00ff")
        else:
            e(f"s_lshl_b32 s3, s{sH}, 6"); e(f"s_add_u32 s{sB}, s{sB}, s3")
            for i in range(2): e(f"s_add_u32 s{sPCr+i}, s{sB}, {8192+163840*i}")
            e(f"s_lshr_b32 s{sA}, s{sH}, 4"); e(f"s_add_u32 s{sA}, s{sA}, 8"); e(f"s_bfe_u32 s{sB}, s{sH}, 0x20002"); e(f"s_and_b32 s{sMo}, s{sH}, 3")
            e(f"s_mov_b32 s{mSt}, 0x000f000f")
        e(f"s_mov_b32 s{mSt+1}, 0")
        e(f"s_lshl_b32 s{sMr}, s{sA}, 10"); e(f"s_lshl_b32 s3, s{sB}, 6"); e(f"s_add_u32 s{sMr}, s{sMr}, s3"); e(f"s_lshl_b32 s3, s{sMo}, 8"); e(f"s_add_u32 s{sMr}, s{sMr}, s3"); e(f"s_add_u32 s{sMr}, s{sMr}, s{sMl}")
        e(f"s_add_u32 s{sMl}, s{sMl}, {1024*OWN[w][0]}")
        if w<3:
            e(f"s_lshl_b32 s{sA}, s{sA}, 7"); e(f"s_mul_i32 s{sB}, s{sB}, 2560"); e(f"s_add_u32 s{sA}, s{sA}, s{sB}"); e(f"s_lshl_b32 s3, s{sMo}, 3"); e(f"s_add_u32 s{sA}, s{sA}, s3")
            srd(e,8,18,8*1280)
            e("v_bfe_u32 v40, v0, 4, 1"); e("v_mul_u32_u24 v40, 1280, v40"); e("v_and_b32 v41, 7, v0"); e("v_lshl_add_u32 v40, v41, 1, v40")
            for x in range(4): e(f"buffer_load_ushort v{44+x}, v40, {WT}, s{sA} offen offset:{32*x}")
            red_addr(e,w,42,43,vT)
            e("v_lshl_or_b32 v44, v45, 16, v44"); e("v_lshl_or_b32 v45, v47, 16, v46")
        e.waitall()
        start(g,e,w)
        if w<3:
            e(f"s_mov_b64 exec, s[{mSt}:{mSt+1}]"); e(f"buffer_store_dwordx2 v[44:45], v43, {WS}, s{sMr} offen sc1"); e("s_mov_b64 exec, -1")
        else:
            lp=g.uniq("f0"); ld=g.uniq("f0d"); e(f"s_mov_b32 s{sTO}, 0"); e.label(lp)
            e(f"v_mov_b32 v{vT}, 0"); e("s_mov_b64 exec, 1"); e(f"buffer_atomic_add v{vT}, off, {WS}, s{sCQ} sc0"); e("s_mov_b64 exec, -1")
            e(f"v_readfirstlane_b32 s3, v{vT}"); e("s_nop 3"); e("s_cmp_ge_u32 s3, 8"); e(f"s_cbranch_scc1 {ld}"); e("s_sleep 8"); timeout(e,lp); e.label(ld)
            e(f"s_add_u32 s{sCQ}, s{sCQ}, 4")
        e(f"v_and_b32 v{vT}, 2, v0"); e(f"v_mul_u32_u24 v{vT}, 0x5555, v{vT}"); e(f"v_add_u32 v{vIdx}, 0x4444, v{vT}")
        e(f"s_mov_b32 m0, {L_MEM+2048}")
        if opt.get("diag"):
            for i in range(ACC,100): e(f"s_mov_b32 s{i}, 0")
        if opt.get("ldiag"): e("s_memrealtime s[26:27]")
        e.waitall(); e("s_barrier")
        for LS,LN in (("","f"),(" sc1","s")):
            c0=dict(e.cnt); loop(g,e,p,opt,LS,LN,cold)
            if LN=="s" and opt.get("cnt"): print(w,{k:e.cnt[k]-c0.get(k,0) for k in e.cnt})
            while cold: cold.pop(0)()
        g.label(f"L_ch{w}_end")
        if opt.get("diag") or opt.get("ldiag"):
            g("s_memrealtime s[28:29]"); g("s_waitcnt lgkmcnt(0)")
            if opt.get("ldiag"):
                g("s_sub_u32 s86, s22, s18"); g("s_sub_u32 s87, s24, s20"); g("s_sub_u32 s88, s26, s100"); g("s_sub_u32 s89, s28, s100"); g("s_mov_b32 s90, s100")
            g(f"s_lshl_b32 s3, s{sLam}, 5"); g(f"s_add_u32 s3, s3, s{sH}"); g("s_lshl_b32 s3, s3, 8"); g(f"s_add_u32 s3, s3, {DBG+64*w}")
            for i in range(14): g(f"v_mov_b32 v{8+i}, s{ACC+i}")
            g("s_mov_b64 exec, 1")
            for i in range(4): g(f"buffer_store_dwordx4 {v4(8+4*i)}, off, {WS}, s3 offset:{16*i}")
        g("s_waitcnt vmcnt(0)")
        g("s_endpgm")
```

```python
from asmlib import *
from layout import *
import math, struct
WS="s[4:7]"; WT="s[8:11]"
sX,sTK,sW,sTO=48,49,50,51
TIMEOUT=1<<17
def f32bits(x): return struct.unpack("<I", struct.pack("<f", x))[0]
def timeout(g, back):
    g(f"s_add_u32 s{sTO}, s{sTO}, 1")
    g(f"s_cmp_lt_u32 s{sTO}, {TIMEOUT}")
    g(f"s_cbranch_scc1 {back}")
    g("s_branch L_bail")
MF="v_mfma_f32_16x16x32_bf16"
def q4(k,a): return f"{k}[{a}:{a+3}]"
def fl_voff(g, vD, vT, row_stride, RB):
    n=RB//16; sh={8:3,16:4}[n]
    g(f"v_lshrrev_b32 v{vD}, {sh}, v0"); g(f"s_mov_b32 s3, {row_stride}"); g(f"v_mul_lo_u32 v{vD}, v{vD}, s3")
    if RB==128:
        g(f"v_lshrrev_b32 v{vT}, 3, v0"); g(f"v_and_b32 v{vT}, 6, v{vT}")
    else:
        g(f"v_lshrrev_b32 v{vT}, 3, v0"); g(f"v_and_b32 v{vT}, 6, v{vT}")
    g(f"v_xor_b32 v{vT}, v{vT}, v0"); g(f"v_and_b32 v{vT}, {n-1}, v{vT}")
    g(f"v_lshl_add_u32 v{vD}, v{vT}, 4, v{vD}")
    if RB==256: g(f"v_xor_b32 v{vD+1}, 128, v{vD}" if row_stride%256==0 else f"v_xor_b32 v{vT}, 8, v{vT}\nv_lshrrev_b32 v{vD+1}, 4, v0\nv_mul_lo_u32 v{vD+1}, v{vD+1}, s3\nv_lshl_add_u32 v{vD+1}, v{vT}, 4, v{vD+1}")

def fl_dma(g, vOff, sOff, n, step, sL, lds_off, two=False):
    for i in range(n):
        g(f"s_add_u32 m0, s{sL}, {lds_off+i*1024}"); g("s_nop 0")
        g(f"buffer_load_dwordx4 v{vOff+(i&1 if two else 0)}, {WT}, s{sOff} offen lds")
        g(f"s_add_u32 s{sOff}, s{sOff}, {step}")
```

```python
import re
def _regs(tok):
    tok=tok.strip().lstrip('-')
    m=re.fullmatch(r"([va])\[(\d+):(\d+)\]",tok)
    if m: return {(m.group(1),i) for i in range(int(m.group(2)),int(m.group(3))+1)}
    m=re.fullmatch(r"([va])(\d+)",tok)
    if m: return {(m.group(1),int(m.group(2)))}
    return set()
TRANS=("v_exp_","v_rcp_","v_log_","v_rsq_","v_sqrt_")
class E:
    def __init__(s,g):
        s.g=g; s.h=[]; s.ds=[]; s.vm=[]; s.n=0; s.cnt={}
    def _emit(s,t,kind,R=frozenset(),W=frozenset(),st=1):
        s.g(t); s.h.append((kind,R,W,st)); s.cnt[kind]=s.cnt.get(kind,0)+1
    def nop(s,n):
        while n>0:
            k=min(n,16); s._emit(f"s_nop {k-1}","nop",st=k); n-=k
    def _wait(s,ds=None,vm=None):
        p=[]
        if vm is not None: p.append(f"vmcnt({min(vm,63)})"); s.vm=s.vm[len(s.vm)-vm:] if vm else []
        if ds is not None: p.append(f"lgkmcnt({min(ds,15)})"); k=min(ds,15); s.ds=s.ds[len(s.ds)-k:] if k else []
        if p: s._emit("s_waitcnt "+" ".join(p),"wait")
    def wait(s,*tags):
        d=[i for i,o in enumerate(s.ds) if o[0] in tags]; v=[i for i,o in enumerate(s.vm) if o[0] in tags]
        s._wait(len(s.ds)-1-max(d) if d else None, len(s.vm)-1-max(v) if v else None)
    def waitall(s,ds=True,vm=True):
        s._emit("s_waitcnt"+(" vmcnt(0)" if vm else "")+(" lgkmcnt(0)" if ds else ""),"wait")
        if ds: s.ds=[]
        if vm: s.vm=[]
    def label(s,l,flush=False):
        s.g.label(l)
    def _dist(s,pred):
        d=0
        for x in reversed(s.h[-24:]):
            if pred(x): return d
            d+=x[3]
        return 99
    def __call__(s,t,tag=None):
        for l in t.strip("\n").split("\n"): r=s.one(l.strip(),tag)
        return r
    def one(s,t,tag=None):
        op=t.split()[0]; rest=t[len(op):]
        ops=[o.strip().split()[0] if o.strip() else "" for o in rest.split(",")]
        rg=[_regs(o) for o in ops]
        allr=set().union(*rg) if rg else set()
        if op.startswith("s_"):
            if op=="s_barrier": assert True
            if op=="s_nop": s._emit(t,"nop",st=int(ops[0])+1); return
            W={("x","exec")} if ops and ops[0].startswith("exec") else set()
            if ops and ops[0]=="m0": W={("x","m0")}
            s._emit(t,"salu",frozenset(),frozenset(W)); return
        if op.startswith("v_smfmac"): kind,W,R="mfma",rg[0],allr
        elif op.startswith("v_mfma"): kind,W,R="mfma",rg[0],set().union(*rg[1:])
        elif op.startswith("ds_read"): kind,W,R="ds",rg[0],rg[1]
        elif op.startswith("ds_"): kind,W,R="ds",set(),allr
        elif op.startswith("buffer_load"):
            if " lds" in t: kind,W,R="vm",set(),rg[0]
            else: kind,W,R="vm",rg[0],rg[1]
        elif op.startswith("buffer_atomic"): kind,W,R="vm",(rg[0] if " sc0" in t else set()),(set() if t.endswith(";nodep") else allr)
        elif op.startswith("buffer_store"): kind,W,R="vm",set(),allr
        elif op.startswith("v_permlane"): kind,W,R="valu",allr,allr
        elif op.startswith("v_cmp"): kind,W,R="valu",{("x","vcc")} if ops[0]=="vcc" else {("x",ops[0])},allr
        elif op.startswith("v_read"): kind,W,R="valu",{("x",ops[0])},allr
        else:
            kind,W="valu",rg[0]; R=set().union(*rg[1:]) if len(rg)>1 else set()
            if "_dpp" in op or op.startswith("v_writelane") or op.startswith("v_fmac"): R=R|rg[0]
            if op.startswith("v_cndmask"): R=R|{("x",ops[3])}
        T=R|W
        d=[i for i,o in enumerate(s.ds) if (o[1]&T) or (kind!="ds" and o[2]&W)]
        v=[i for i,o in enumerate(s.vm) if o[1]&T]
        if kind=="ds": d=[i for i in d if s.ds[i][1]&R]
        if kind=="vm": v=[i for i in v if s.vm[i][1]&R]
        if d or v: s._wait(len(s.ds)-1-max(d) if d else None, len(s.vm)-1-max(v) if v else None)
        need=0
        def req(n,pred):
            nonlocal need
            need=max(need,n-s._dist(pred))
        if kind=="mfma":
            req(2,lambda x:x[0] in("valu","trans") and x[2]&R)
            C=rg[0] if op.startswith("v_smfmac") else rg[3]
            AB=rg[1]|rg[2]|(rg[3] if op.startswith("v_smfmac") else set())
            req(8,lambda x:x[0]=="mfma" and x[2]&AB)
            req(6,lambda x:x[0]=="mfma" and x[2]&(C|W) and not (x[2]==C and C==W))
        else:
            req(8,lambda x:x[0]=="mfma" and x[2]&T)
            if kind=="valu":
                req(3,lambda x:x[0]=="mfma" and x[1]&W)
                if "_dpp" in op or op.startswith("v_permlane"): req(2,lambda x:x[0] in("valu","trans") and x[2]&R)
                if op.startswith("v_read"): req(1,lambda x:x[0] in("valu","trans") and x[2]&R)
                if not op.startswith(TRANS): req(1,lambda x:x[0]=="trans" and x[2]&R)
                req(2,lambda x:x[0]=="valu" and any(r[0]=="x" and r in R for r in x[2]))
                req(2,lambda x:x[0]=="vm" and not x[2] and x[1]&W)
            if kind in("vm","ds"): req(1,lambda x:x[0]=="trans" and x[2]&R)
            if kind=="vm" and " lds" in t: req(1,lambda x:("x","m0") in x[2])
        if need>0: s.nop(need)
        if kind=="valu" and op.startswith(TRANS): kind="trans"
        s._emit(t,kind,frozenset(R),frozenset(W),st=(3 if op.startswith("v_smfmac") else 2) if kind=="mfma" else 1)
        s.n+=1; tag=tag or s.n
        if kind=="ds": s.ds.append((tag,frozenset(W),frozenset(R-rg[0]) if not W else frozenset()))
        if kind=="vm": s.vm.append((tag,frozenset(W),frozenset()))
        return tag
```

```python
import os
S=2048; D=640; H=32; DH=128; NSEG=64; M=8
LAG=int(os.environ.get('LAG','7'))
AHEAD=int(os.environ.get('AHEAD','16'))
NEX=int(os.environ.get('NEX','8'))
WS_BYTES=268435456
def al(x,a=4096): return (x+a-1)//a*a
_o=0
def alloc(n):
    global _o
    r=_o; _o=al(_o+n); return r
APG    = alloc(64*128)
CQKV   = alloc(2*32*256)
CQA    = alloc(2*32*256)
CO     = alloc(40*512)
CPBS=32*512; CXNS=96*256
CPB    = alloc(4*CPBS)
CXN    = alloc(4*CXNS)
PC     = alloc(2*32*11264)
ZERO_END=_o
_o=al(_o,65536); SENT0=_o
MEM    = alloc(2*4*16384)
EX     = alloc(2*NEX*32*4096)
SENT_END=_o
ST     = alloc(2*32*4*8*2048)
_o=al(_o,1<<22)
KQ     = alloc(2*64*32*16384)
VO     = alloc(2*64*32*16384)
LST    = 64*32*16384
PB     = alloc(2*64*8*81920)
XN     = alloc(2*64*40960)
KVT    = alloc(640*4096)
YT     = alloc(32*81920)
DBG    = alloc(2<<20)
DBG2   = alloc(1024*128*32)
DBG3   = alloc(65536)
assert _o<=WS_BYTES, _o
OOB = WS_BYTES
CLEARS=[(0,PC,0)]
CLEARS2=[(PC,ZERO_END,0),(SENT0,SENT_END,-1)]
```

```python
from asmlib import *
from layout import *
from common import *
import bulk as bk
W2="s[12:15]"; DB="s[96:99]"
sHI,sRole=82,83
CH_LDS=13312
KVO,EO,OO=0,4608,4608+4160
NH=96; NHW=4*NH
BA,BB,BY1,BC1,BC2,BY2=(4,96),(68,40),(8,160),(72,16),(12,64),(76,96)
BB2=(80,40)
BE=(84,24)
ROW1,ROW2=384,1024
def dbsrd(g): srd(g, 96, 44, 256)

def arrive_w(g, bar, v):
    off,n=bar
    dbsrd(g)
    l=g.uniq("aw")
    g(f"v_mov_b32 v{v}, 1"); g("s_mov_b64 exec, 1")
    g(f"buffer_atomic_add v{v}, off, {DB}, 0 offset:{off} sc0")
    g("s_waitcnt vmcnt(0)")
    g(f"v_cmp_eq_u32 vcc, {n-1}, v{v}"); g(f"s_cbranch_vccz {l}")
    g(f"buffer_store_dword v{v}, off, {DB}, 0 offset:{off+128} sc1")
    g.label(l)
    g("s_mov_b64 exec, -1")

def arrive(g, bar):
    g("s_waitcnt vmcnt(0)"); g("s_barrier")
    l=g.uniq("ar")
    g(f"s_cmp_lg_u32 s{sW}, 3"); g(f"s_cbranch_scc1 {l}")
    arrive_w(g,bar,1)
    g.label(l)

def wait_bar(g, off, n, v, par=False):
    dbsrd(g)
    g(f"v_mov_b32 v{v}, {off+128}")
    lp=g.uniq("wb"); ld=g.uniq("wbd")
    g(f"s_mov_b32 s{sTO}, 0"); g(f"s_mov_b64 exec, {3 if par else 1}")
    g.label(lp)
    g(f"buffer_load_dword v{v+1}, v{v}, {DB}, 0 offen sc1")
    g("s_waitcnt vmcnt(0)")
    g(f"v_cmp_eq_u32 vcc, 0, v{v+1}")
    g(f"s_cbranch_vccz {ld}")
    g("s_sleep 2")
    timeout(g, lp)
    g.label(ld)
    g("s_mov_b64 exec, -1")

def wait_wg(g, off, n, v, par=False):
    l=g.uniq("ww")
    g(f"s_cmp_lg_u32 s{sW}, 0"); g(f"s_cbranch_scc1 {l}")
    wait_bar(g,off,n,v,par)
    g.label(l)
    g("s_barrier")
    if par: wait_bar(g,off,n,v,par)

sHW,sA,sB,sInv,sEps,sRow,sCh,sLB,sN=60,73,74,63,68,69,70,71,72
P=lambda r: f"v[{r}:{r+1}]"

def ln_rows(g, stride, end, between=None):
    srd(g, 8, 16, 2048*1280)
    g("v_lshlrev_b32 v1, 4, v0"); g("v_lshlrev_b32 v2, 3, v0")
    g("v_cmp_lt_u32 vcc, 31, v0"); g(f"v_mov_b32 v3, {OOB}"); g("s_nop 1"); g("v_cndmask_b32 v7, v2, v3, vcc")
    g(f"s_mov_b32 s{sInv}, {hex(f32bits(1/640))}"); g(f"s_mov_b32 s{sEps}, {hex(f32bits(1e-5))}")
    def rowload(add):
        g(f"s_add_u32 s3, s{sN}, {add}"); g("s_mul_i32 s3, s3, 1280")
        for i in range(3): g(f"buffer_load_dwordx2 v[{48+2*i}:{48+2*i+1}], v{2 if i<2 else 7}, {WT}, s3 offen offset:{512*i}")
    rowload(0)
    if between: between()
    else: g("s_waitcnt vmcnt(0)")
    l=g.uniq("ln")
    g.label(l)
    bk.unpack6(g,12,48)
    if not between: rowload(stride)
    g(f"s_and_b32 s3, s{sN}, 15")
    bk.xn_addr(g, 4, 9, 3)
    g("v_cndmask_b32 v8, v4, v3, vcc")
    bk.layernorm(g,12,36,10,11,9,sInv,sEps,packed=24)
    g(f"s_mul_i32 s3, s{sN}, 1280"); g(f"s_add_u32 s3, s3, {XN}")
    for i in range(3): g(f"buffer_store_dwordx2 v[{24+2*i}:{24+2*i+1}], v{4 if i<2 else 8}, {WS}, s3 offen offset:{512*i} sc1")
    if not between:
        g(f"s_add_u32 s{sN}, s{sN}, {stride}")
        g("s_waitcnt vmcnt(3)")
        g(f"s_cmp_lt_u32 s{sN}, {end}"); g(f"s_cbranch_scc1 {l}")

def conv_loads(g, hi, h=True, k=True):
    nK = 4 if hi else 2; vH=96; vKv = 240 if hi else vH+8
    if h:
        g(f"s_lshl_b32 s{sA}, s{sCh}, 12"); g(f"s_add_u32 s{sB}, s{sA}, 2")
        for i in range(nK): g(f"buffer_load_dwordx4 {q4('v',vH+4*i)}, v130, {WT}, s{sA} offen offset:{1024*i}")
        for i in range(nK): g(f"buffer_load_dwordx4 {q4('v',vH+16+4*i)}, v130, {WT}, s{sB} offen offset:{1024*i}")
        g(f"s_lshl_b32 s3, s{sCh}, 1")
        g(f"buffer_load_ushort v{vH+32}, off, {W2}, s3")
    if k:
        g(f"s_lshl_b32 s3, s{sCh}, 12"); g(f"s_add_u32 s3, s3, {KVT}")
        for i in range(nK): g(f"buffer_load_dwordx4 {q4('v',vKv+4*i)}, v130, {WS}, s3 offen offset:{1024*i} sc1")
def conv_pref(g, hi):
    srd(g, 8, 38, 640*4096); srd(g, 12, 40, 1280)
    g("v_lshlrev_b32 v130, 4, v0")
    conv_loads(g, hi, True, bool(hi))

def conv(g, hi, step, pre_wait=None):
    nK = 4 if hi else 2
    nX = 8 if hi else 4
    srd(g, 8, 38, 640*4096); srd(g, 12, 40, 1280)
    g("v_lshlrev_b32 v130, 4, v0")
    g(f"v_add_u32 v7, s{sLB}, v130")
    for i in range(4): g(f"v_mov_b32 v{8+i}, 0")
    g("s_mov_b32 exec_hi, 0"); g(f"ds_write_b128 v7, v[8:11] offset:{KVO}")
    g("s_mov_b32 exec_lo, 3"); g(f"ds_write_b128 v7, v[8:11] offset:{EO}"); g(f"ds_write_b128 v7, v[8:11] offset:{OO}")
    g("s_mov_b64 exec, -1")
    vAa,vBa,vKa,vYa,vDd=14,16,15,13,12
    vFA,vFB,vD,vH=32,64,144,96
    g("v_and_b32 v8, 15, v0"); g("v_lshrrev_b32 v9, 5, v0"); g("v_sub_u32 v10, v8, v9"); g("v_lshlrev_b32 v10, 5, v10")
    g("v_and_b32 v11, 16, v0"); g("v_add_u32 v10, v10, v11")
    g(f"s_add_u32 s3, s{sLB}, {KVO+512-32*14}"); g(f"v_add_u32 v{vAa}, s3, v10")
    g("v_lshlrev_b32 v10, 5, v9"); g("v_lshl_add_u32 v10, v8, 1, v10"); g("v_sub_u32 v10, v10, v11")
    g("v_and_b32 v11, 1, v0"); g("v_cmp_eq_u32 vcc, 1, v11")
    g(f"v_mov_b32 v12, {OO+16}"); g(f"v_mov_b32 v11, {EO+18}"); g("s_nop 0"); g("v_cndmask_b32 v11, v12, v11, vcc")
    g(f"v_add3_u32 v{vBa}, v10, v11, s{sLB}")
    for m in range(1,nX): g(f"v_add_u32 v{vBa+m}, {512*m}, v{vBa}")
    g("v_lshlrev_b32 v10, 5, v8"); g("v_lshl_add_u32 v10, v9, 4, v10"); g("v_and_b32 v11, 16, v0"); g("v_lshrrev_b32 v11, 1, v11"); g("v_xor_b32 v11, 8, v11")
    g(f"s_add_u32 s3, s{sLB}, {KVO+512}"); g(f"v_add3_u32 v{vKa}, v10, v11, s3")
    g("v_and_b32 v10, 1, v0"); g("v_lshlrev_b32 v10, 4, v10"); g("v_lshrrev_b32 v11, 4, v0"); g("v_lshl_add_u32 v10, v11, 2, v10")
    g("s_mov_b32 s3, 40960"); g(f"v_mul_lo_u32 v{vYa}, v10, s3"); g("v_lshrrev_b32 v11, 1, v8"); g(f"v_lshl_add_u32 v{vYa}, v11, 3, v{vYa}")
    vKv = 240 if hi else vH+8
    if pre_wait:
        pre_wait(); conv_loads(g,hi,False,True)
    g("s_waitcnt vmcnt(0)")
    lt=g.uniq("cv")
    g.label(lt)
    g("s_waitcnt vmcnt(4)")
    for i in range(nK):
        g(f"ds_write_b128 v7, {q4('v',vKv+4*i)} offset:{KVO+512+1024*i}")
        g(f"ds_write_b128 v7, {q4('v',vH+4*i)} offset:{EO+32+1024*i}")
        g(f"ds_write_b128 v7, {q4('v',vH+16+4*i)} offset:{OO+32+1024*i}")
    g(f"v_lshlrev_b32 v8, 16, v{vH}"); g(f"v_lshlrev_b32 v{vDd}, 16, v{vH+32}")
    g("s_mov_b64 exec, 1"); g(f"ds_write_b32 v7, v8 offset:{OO+28}"); g("s_mov_b64 exec, -1")
    g(f"s_lshl_b32 s{sN}, s{sCh}, 6"); g(f"s_add_u32 s{sN}, s{sN}, {YT+hi*32*40960}")
    g(f"s_add_u32 s{sCh}, s{sCh}, s{step}")
    g("s_waitcnt lgkmcnt(0)")
    conv_loads(g,hi)
    def loads(ci):
        c0=2*ci; o=144*(ci&1); L=[]
        for x in range(nX):
            L.append(f"ds_read_b128 {q4('v',vFA+o+4*x)}, v{vAa} offset:{32*(14-c0)+512*x}")
            L.append(f"ds_read2_b32 v[{vFB+o+4*x}:{vFB+o+4*x+1}], v{vBa+x} offset0:{8*c0} offset1:{8*c0+1}")
            L.append(f"ds_read2_b32 v[{vFB+o+4*x+2}:{vFB+o+4*x+3}], v{vBa+x} offset0:{8*c0+2} offset1:{8*c0+3}")
        return L
    for x in loads(0): g(x)
    for ci in range(8):
        o=144*(ci&1)
        g("s_waitcnt lgkmcnt(0)")
        mf=[]
        for m in range(nX):
            for d in range(nX-m):
                i=m+d
                if i<4*hi: continue
                mf.append(f"{MF} {q4('v',vD+4*(i&3))}, {q4('v',vFB+o+4*m)}, {q4('v',vFA+o+4*d)}, {'0' if (ci==0 and m==0) else q4('v',vD+4*(i&3))}")
        interleave(g, mf, loads(ci+1) if ci<7 else [f"ds_read_b64 v[{vFA+2*i}:{vFA+2*i+1}], v{vKa} offset:{512*(i+4*hi)}" for i in range(4)], per=1 if hi else 2)
    g("s_waitcnt lgkmcnt(0)")
    for i in range(4):
        b=vFB+4*i
        g(f"v_and_b32 v{b}, 0xffff0000, v{vFA+2*i+1}"); g(f"v_lshlrev_b32 v{b+1}, 16, v{vFA+2*i+1}")
        g(f"v_and_b32 v{b+2}, 0xffff0000, v{vFA+2*i}"); g(f"v_lshlrev_b32 v{b+3}, 16, v{vFA+2*i}")
        for r in range(4): g(f"v_mul_f32 v{b+r}, v{b+r}, v{vDd}")
    bk.rnd_pairs(g,[vFB+i for i in range(16)],8)
    bk.rnd_pairs(g,[vD+i for i in range(16)],8)
    for i in range(0,16,2): g(f"v_pk_add_f32 {P(vD+i)}, {P(vD+i)}, {P(vFB+i)}")
    for rr in range(4):
        for q in range(2): g(f"v_cvt_pk_bf16_f32 v{160+2*rr+q}, v{vD+8*q+rr}, v{vD+8*q+4+rr}")
        g(f"buffer_store_dwordx2 {P(160+2*rr)}, v{vYa}, {WS}, s{sN} offen sc1")
        g(f"s_add_u32 s{sN}, s{sN}, 40960")
    g(f"s_cmp_lt_u32 s{sCh}, 640"); g(f"s_cbranch_scc1 {lt}")

def helper(g):
    T=bk.TRACE[0]
    g.label("L_helper")
    g(f"s_lshl_b32 s{sHW}, s{sHI}, 2"); g(f"s_add_u32 s{sHW}, s{sHW}, s{sW}")
    def clears(CL=CLEARS,NHW=NHW):
        for (lo,hi,val) in CL:
            l=g.uniq("cl"); le=g.uniq("cle")
            for i in range(4): g(f"v_mov_b32 v{12+i}, {val}")
            g(f"s_lshl_b32 s{sA}, s{sHW}, 10"); g(f"s_add_u32 s{sA}, s{sA}, {lo}")
            g.label(l)
            g(f"s_cmp_ge_u32 s{sA}, {hi}"); g(f"s_cbranch_scc1 {le}")
            g(f"buffer_store_dwordx4 v[12:15], v1, {WS}, s{sA} offen sc1")
            g(f"s_add_u32 s{sA}, s{sA}, {NHW*1024}")
            g(f"s_branch {l}")
            g.label(le)
            g("s_nop 1")
        g(f"s_waitcnt vmcnt({sum((hi-lo)//1024//NHW for lo,hi,_ in CL)})")
    g(f"s_mov_b32 s{sN}, s{sHW}")
    ln_rows(g,0,0,clears)
    arrive(g,BA)
    tl(g,T,DBG3,sHI,0)
    l=g.uniq("np")
    g(f"s_cmp_lt_u32 s{sHI}, 72"); g(f"s_cbranch_scc1 {l}")
    g(f"s_sub_u32 s{sHW}, s{sHW}, 288"); g("v_lshlrev_b32 v1, 4, v0")
    clears(CLEARS2,96)
    arrive(g,BE)
    g(f"s_add_u32 s{sHW}, s{sHW}, 288")
    g(f"s_cmp_lt_u32 s{sHI}, 80"); g(f"s_cbranch_scc1 {l}")
    g(f"s_add_u32 s{sN}, s{sHW}, {ROW1-320}")
    ln_rows(g,64,ROW2)
    arrive(g,BC1)
    tl(g,T,DBG3,sHI,1)
    g.label("L_help_ln2")
    wait_wg(g,*BE,1)
    g("s_branch L_help_done")
    g.label(l)
    l=g.uniq("k2")
    g(f"s_sub_u32 s{sHW}, s{sHW}, 128")
    g(f"s_cmp_eq_u32 s{sRole}, 1"); g(f"s_cbranch_scc1 {l}")
    g(f"s_add_u32 s3, s{sHW}, 288"); g(f"s_add_u32 s{sHW}, s{sHW}, 128"); g(f"s_cmp_eq_u32 s{sRole}, 0"); g(f"s_cselect_b32 s{sHW}, s3, s{sHW}")
    if bk.OPT.get("kvdefer",0): wait_wg(g,*BB,24)
    g.label(l)
    vK,vV,vWt=100,144,176
    srd(g, 8, 32, 2048*1280); srd(g, 12, 34, 2048*1280)
    g(f"s_mul_i32 s{sA}, s{sHW}, 6554"); g(f"s_lshr_b32 s{sA}, s{sA}, 16"); g(f"s_mul_i32 s3, s{sA}, 10"); g(f"s_sub_u32 s{sB}, s{sHW}, s3")
    g(f"s_mul_i32 s{sRow}, s{sA}, {64*1280}"); g(f"s_lshl_b32 s3, s{sB}, 7"); g(f"s_add_u32 s{sRow}, s{sRow}, s3")
    g("v_lshrrev_b32 v90, 3, v0"); g("s_mov_b32 s3, 10240"); g("v_mul_lo_u32 v91, v90, s3"); g("v_and_b32 v92, 7, v0"); g("v_lshl_add_u32 v91, v92, 4, v91")
    g(f"v_add_u32 v91, s{sRow}, v91")
    g("v_subrev_u32 v93, 3840, v91"); g("v_cmp_gt_i32 vcc, 0, v93"); g("s_nop 1"); g("v_cndmask_b32 v93, v93, v3, vcc")
    for r in range(3): g(f"buffer_load_dwordx4 {q4('v',vK+4*r)}, v93, {WT}, 0 offen offset:{1280*r}")
    for r in range(8):
        g(f"s_mov_b32 s3, {1280*r}")
        g(f"buffer_load_dwordx4 {q4('v',vK+12+4*r)}, v91, {WT}, s3 offen")
        g(f"buffer_load_dwordx4 {q4('v',vV+4*r)}, v91, {W2}, s3 offen")
    srd(g, 8, 36, 640*8)
    g("v_lshlrev_b32 v93, 6, v92"); g(f"s_lshl_b32 s3, s{sB}, 9")
    for i in range(4): g(f"buffer_load_dwordx4 {q4('v',vWt+4*i)}, v93, {WT}, s3 offen offset:{16*i}")
    vU,vA,vP,vW,vO,vT=12,36,52,68,76,84
    g("v_lshlrev_b32 v94, 15, v92"); g("v_lshl_add_u32 v94, v90, 4, v94")
    g(f"s_lshl_b32 s{sCh}, s{sB}, 18"); g(f"s_lshl_b32 s3, s{sA}, 7"); g(f"s_add_u32 s{sCh}, s{sCh}, s3"); g(f"s_add_u32 s{sCh}, s{sCh}, {KVT}")
    g("s_waitcnt vmcnt(0)")
    tl(g,T,DBG3,sHI,7)
    def rnd(D):
        for r in range(8):
            g(f"v_cvt_pk_bf16_f32 v{vT}, v{D+2*r}, v{D+2*r+1}"); g(f"v_lshlrev_b32 v{D+2*r}, 16, v{vT}"); g(f"v_and_b32 v{D+2*r+1}, 0xffff0000, v{vT}")
    for c in range(4):
        for r in range(11):
            g(f"v_lshlrev_b32 v{vU+2*r}, 16, v{vK+4*r+c}"); g(f"v_and_b32 v{vU+2*r+1}, 0xffff0000, v{vK+4*r+c}")
        for j in range(4):
            for h in range(2):
                src=vWt+4*c+2*h+j//2
                g(f"v_lshlrev_b32 v{vW+2*j+h}, 16, v{src}" if j%2==0 else f"v_and_b32 v{vW+2*j+h}, 0xffff0000, v{src}")
        for j in range(4):
            D=vA if j==0 else vP
            for r in range(8): g(f"v_pk_mul_f32 {P(D+2*r)}, {P(vU+2*(r+j))}, {P(vW+2*(3-j))}")
            rnd(D)
            if j>0:
                for r in range(8): g(f"v_pk_add_f32 {P(vA+2*r)}, {P(vA+2*r)}, {P(vP+2*r)}")
                rnd(vA)
        for r in range(8):
            g(f"v_lshlrev_b32 v{vU+2*r}, 16, v{vV+4*r+c}"); g(f"v_and_b32 v{vU+2*r+1}, 0xffff0000, v{vV+4*r+c}")
        for r in range(8): g(f"v_pk_mul_f32 {P(vA+2*r)}, {P(vA+2*r)}, {P(vU+2*r)}")
        for h in range(2):
            for q in range(4): g(f"v_cvt_pk_bf16_f32 v{vO+4*h+q}, v{vA+2*(7-2*q)+h}, v{vA+2*(6-2*q)+h}")
            g(f"s_add_u32 s3, s{sCh}, {(2*c+h)*4096}")
            g(f"buffer_store_dwordx4 {q4('v',vO+4*h)}, v94, {WS}, s3 offen sc1")
    l=g.uniq("k3")
    g(f"s_cmp_eq_u32 s{sRole}, 1"); g(f"s_cbranch_scc1 {l}")
    arrive(g,BB2)
    tl(g,T,DBG3,sHI,1)
    g("s_branch L_help_conv")
    g.label(l)
    arrive(g,BB)
    tl(g,T,DBG3,sHI,1)
    bk.wo_weights(g,0); bk.wo_weights(g,1)
    g.label("L_help_conv")
    g(f"s_cmp_ge_u32 s{sHI}, 72"); g("s_cbranch_scc1 L_help_ln2")
    g(f"s_cmp_ge_u32 s{sHI}, 64"); g("s_cbranch_scc1 L_help_done")
    g(f"s_lshl_b32 s{sCh}, s{sHI}, 2"); g(f"s_add_u32 s{sCh}, s{sCh}, s{sW}"); g(f"s_add_u32 s{sCh}, s{sCh}, 384")
    g(f"s_mul_i32 s{sLB}, s{sW}, {CH_LDS}"); g(f"s_mov_b32 s{sRow}, 640")
    conv_pref(g,0)
    call(g,"L_conv0")
    arrive(g,BY1)
    tl(g,T,DBG3,sHI,3)
    g.label("L_help_done")
    wait_wg(g,*BA,1)
    g(f"s_cmp_eq_u32 s{sRole}, 0"); g("s_cbranch_scc1 L_t4")
    g(f"s_cmp_eq_u32 s{sRole}, 1"); g("s_cbranch_scc1 L_wo")
    g("s_branch L_att")

def t4_late(g, sR):
    g(f"s_lshl_b32 s{sHW}, s{sR}, 1"); g(f"s_and_b32 s3, s{sW}, 1"); g(f"s_add_u32 s{sHW}, s{sHW}, s3")
    g(f"s_mul_i32 s{sLB}, s3, {CH_LDS}"); g(f"s_add_u32 s{sLB}, s{sLB}, {81920+49152}")
    g(f"s_add_u32 s{sN}, s{sHW}, {ROW2}")
    ln_rows(g,64,2048)
    g("s_waitcnt vmcnt(0)"); arrive_w(g,BC2,1)
    conv_hi(g)
    wait_bar(g,*BY2,1)

def conv_hi(g):
    g(f"s_mov_b32 s{sCh}, s{sHW}"); g(f"s_mov_b32 s{sRow}, 96")
    wait_bar(g,*BB,1); wait_bar(g,*BB2,1)
    conv_pref(g,1)
    call(g,"L_conv1")
    g("s_waitcnt vmcnt(0)"); arrive_w(g,BY2,1)

def conv_subs(g):
    for hi in range(2):
        g.label(f"L_conv{hi}")
        conv(g,hi,sRow,(lambda: wait_wg(g,*BB,24)) if hi==0 else None)
        g("s_setpc_b64 s[76:77]")
def call(g, label):
    l=g.uniq("ca")
    g("s_getpc_b64 s[76:77]"); g.label(l)
    g(f"s_add_u32 s76, s76, {label}-{l}"); g("s_addc_u32 s77, s77, -1")
    g("s_swappc_b64 s[76:77], s[76:77]")
def qkv_conv(g, hi):
    g(f"s_mul_i32 s{sLB}, s{sW}, {CH_LDS}"); g(f"s_add_u32 s{sLB}, s{sLB}, 81920")
    g(f"s_mov_b32 s{sCh}, s75"); g(f"s_mov_b32 s{sRow}, 640")
    call(g,f"L_conv{hi}")
    arrive(g,BY2 if hi else BY1)
    tl(g,bk.TRACE[0],DBG3+16384,101,4+hi,131)
```

```python
from common import *
from emit import E
SM="v_smfmac_f32_16x16x64_bf16"
MF16="v_mfma_f32_16x16x16_bf16"
sH,sLam,sT,sTag,sC1=52,53,54,55,56
sMr,sMw,sMl,sPCw,sKV,sEX,sSTb,sCQ,sAP,sA,sB,sMo=57,58,59,60,61,62,63,12,13,14,15,16
sPCr=64
mB0,mB1=68,70
mSel=72
sSlow=80
sST1,sST2=81,101
mP,mSt=82,84
STP,ACC=18,86
vIdx,vL16,vW1,vW2,vTW,vL8,vOW,vT=0,1,2,3,4,5,6,7
B=[8+8*i for i in range(7)]
L_MEM,L_SCR,L_MP=0,10240,14336
W1,W2=65536,114688
PCS=[10240]
OWN=[[0,1],[2,3],[4,5,8],[6,7,9]]
def v4(a): return f"v[{a}:{a+3}]"
def v2(a): return f"v[{a}:{a+1}]"
def lds(off):
    if off<65536: return vL16,off
    if off<W1+65536 and off<W2: return vW1,off-W1
    return vW2,off-W2
ZOFF=163840-W2

class Plan:
    def __init__(p,w,opt):
        p.w=w; own=OWN[w]
        rest=[t for t in range(10) if t not in own]
        p.order=own+rest
        o=p.order; nh=opt.get("nh",4)
        qk=[('k',o[0],0),('k',o[0],1),('k',o[1],0),('k',o[1],1),('q',o[0],0),('q',o[0],1),('q',o[1],0),('q',o[1],1)]
        p.slot={}
        for i,k in enumerate(opt.get("hk","SLLS")): p.slot[i]=(3+i,k)
        Lp=opt.get("qkL",[8,11,14,17,20,23,26,29,32,35]); Sp=opt.get("qkS",{27:6,39:5})
        Sp={int(k):v for k,v in Sp.items()}
        for n,i in enumerate(Lp): p.slot[i]=(3+(n&1),'L')
        for i,b in Sp.items(): p.slot[i]=(b,'S')
        for s in range(2,10):
            kp=[x for x in range(4) if 4*s+x in p.slot]; assert len(kp)<=2
            for x in (3,2,1,0):
                if len(kp)<2 and x not in kp: kp.append(x)
            kp.sort(); ku=qu=0
            for x in range(4):
                if x in kp: qk.append(('k',o[s],ku)); ku+=1
                else: qk.append(('q',o[s],qu)); qu+=1
        p.qk=qk
        p.vord=[o[8],o[9]]+[t for t in range(10) if t not in (o[8],o[9])]
        p.vs=[('v',t,u) for t in p.vord for u in range(2)]
        p.vslot={i:(3,k) for i,k in zip(opt.get("vL",[2,8]),opt.get("vk","LL"))}
        ks=[w]+[k for k in range(4) if k!=w]
        cn=[1]*5; p.wo=[('o',dt,w) for dt in range(5)]
        for c in opt.get("wo_ord","000111222333444"): dt=int(c); p.wo.append(('o',dt,ks[cn[dt]])); cn[dt]+=1
        p.oslot={i:(6 if n%2==0 else 2,opt.get("ok","SSLLLL")[n]) for n,i in enumerate(opt.get("oL",[3,4,9,10,15,16]))}
        p.loc={}
        for seq,sl in ((p.qk,p.slot),(p.vs,p.vslot),(p.wo,p.oslot)):
            for i,f in enumerate(seq): p.loc[f]=sl[i][1] if i in sl else 'R'
        p.dfr=[f for f in p.qk if p.loc[f]=='D']
        for f in p.dfr: p.loc[f]='S'
        p.zone=([L_SCR+2048*w,L_SCR+2048*w+1024] if w<2 else [])+([1024*t for t in own] if w else [L_MP,L_MP+1024])
        n={k:sum(1 for x in p.loc.values() if x==k) for k in "RLS"}
        assert n['R']==56 and n['L']==18 and n['S']==6, n
        p.home={}; p.lofs={}; p.sidx={}

def init(e,p,opt):
    w=p.w
    vD,vP,vO,vX=8,12,14,16
    TMP=[32,40,48,56]
    fl_voff(e,vD,vT,1280,256); fl_voff(e,vD+2,vT,8192,256)
    def dma(sg):
        m,i=divmod(sg,5)
        if i==0:
            b=[26,24,22,20][m]; e(f"s_mov_b32 s8, s{b}"); e(f"s_and_b32 s9, s{b+1}, 0xffff"); e(f"s_mov_b32 s10, {640*8192}")
        if m==0: e(f"s_mul_i32 s{sA}, s{sH}, {128*1280}"); e(f"s_add_u32 s{sA}, s{sA}, {32*w*1280+256*i}"); st=4*1280
        else: e(f"s_lshl_b32 s{sA}, s{sH}, 8"); e(f"s_add_u32 s{sA}, s{sA}, {(128*i+32*w)*8192}"); st=4*8192
        for j in range(8):
            e(f"s_mov_b32 m0, {(sg%5)*32768+w*8192+j*1024}")
            e(f"buffer_load_dwordx4 v{vD+(2 if m else 0)+(j>>2)}, {WT}, s{sA} offen lds",tag=("dma",sg))
            if j<7: e(f"s_add_u32 s{sA}, s{sA}, {st}")
    for sg in range(5): dma(sg)
    e(f"v_lshrrev_b32 v20, 4, v0"); e("v_bfe_u32 v21, v0, 2, 1"); e("v_bfe_u32 v22, v0, 3, 1"); e("v_and_b32 v23, 1, v20"); e("v_lshrrev_b32 v24, 1, v20")
    e("v_and_b32 v25, 3, v0"); e("v_lshlrev_b32 v25, 3, v25")
    e("v_lshl_add_u32 v26, v22, 1, v23"); e("v_lshl_add_u32 v27, v21, 2, v26"); e("v_lshl_add_u32 v26, v24, 2, v26"); e("v_lshl_add_u32 v26, v21, 4, v26")
    e(f"v_xor_b32 v27, {2*w}, v27"); e("v_lshl_add_u32 v27, v27, 5, v25"); e(f"v_lshl_add_u32 v{vP}, v26, 8, v27")
    e("v_lshl_add_u32 v26, v24, 2, v21"); e("v_lshl_add_u32 v26, v23, 4, v26"); e("v_lshl_add_u32 v27, v23, 2, v21"); e("v_lshl_add_u32 v27, v22, 1, v27")
    e("v_lshl_add_u32 v27, v27, 5, v25"); e(f"v_lshl_add_u32 v{vO}, v26, 8, v27")
    e(f"v_lshlrev_b32 v{vL16}, 4, v0"); e(f"v_add_u32 v{vW1}, {W1}, v{vL16}"); e(f"v_add_u32 v{vW2}, {W2}, v{vL16}")
    pool=[('a',8*i) for i in range(32)]+[('v',64+8*i) for i in range(24)]
    parked=[]; tn=[0]
    def rd(f,dst,slot):
        k,b=dst
        if f[0]=='o':
            T0=(4*(f[1]//2)+f[1]%2) if f[1]<4 else 4*(w//2)+w%2
            e(f"v_xor_b32 v{vX}, {T0*32}, v{vO}"); e(f"v_add_u32 v{vX}, {slot*32768}, v{vX}"); e(f"v_xor_b32 v{vX+1}, 64, v{vX}")
            for x,off in enumerate((0,2,8,10)): e(f"ds_read_b64_tr_b16 {k}[{b+2*x}:{b+2*x+1}], v{vX+(x&1)} offset:{(32*f[2]+off)*256}")
        else:
            e(f"v_xor_b32 v{vX}, {f[2]*32}, v{vP}"); e(f"v_add_u32 v{vX}, {slot*32768}, v{vX}")
            for x,off in enumerate((0,32,8,40)): e(f"ds_read_b64_tr_b16 {k}[{b+2*x}:{b+2*x+1}], v{vX} offset:{(64*(f[1]%2)+off)*256}")
    for sg in range(20):
        m,i=divmod(sg,5); slot=sg%5
        e.wait(("dma",sg)); e("s_barrier")
        if m==0: fr=[('o',dt,k) for dt in range(4) for k in range(4)] if i==w else [('o',4,k) for k in range(4)] if i==4 else []
        else: fr=[("ovkq"[m],2*i+tt,u) for tt in range(2) for u in range(2)]
        late=[]
        for f in fr:
            if p.loc[f]=='S':
                t=TMP[tn[0]%4]; tn[0]+=1; rd(f,('v',t),slot); p.sidx[f]=len(p.sidx)
                e(f"s_add_u32 s3, s{sSTb}, {p.sidx[f]*2048}")
                for h in range(2): e(f"buffer_store_dwordx4 {v4(t+4*h)}, v{vL16}, {WS}, s3 offen offset:{1024*h}")
            elif pool:
                p.home[f]=pool.pop(0); rd(f,p.home[f],slot)
                if p.loc[f]=='L': parked.append(f)
            else:
                t=TMP[len(late)]; rd(f,('v',t),slot); late.append((f,t))
        e.waitall(vm=False); e("s_barrier")
        if sg+5<20: dma(sg+5)
        else:
            for j in range(2 if slot==0 else 4):
                f=parked.pop(); k,b=p.home.pop(f); pool.append((k,b))
                p.lofs[f]=16384+w*4096+j*2048 if slot==0 else slot*32768+w*8192+j*2048
                for h in range(2):
                    va,o=lds(p.lofs[f]+1024*h); e(f"ds_write_b128 v{va}, {k}[{b+4*h}:{b+4*h+3}] offset:{o}")
            e.waitall(vm=False)
            for f,t in late:
                k,b=p.home[f]=pool.pop(0)
                for x in range(8): e(f"v_accvgpr_write_b32 a{b+x}, v{t+x}" if k=='a' else f"v_mov_b32 v{b+x}, v{t+x}")
    assert not pool and not parked

def red_addr(e,w,vA,vS,t):
    sh=3 if w<2 else 2
    e(f"v_lshrrev_b32 v{vA}, {4+sh}, v{vL16}"); e(f"v_mul_u32_u24 v{vA}, {PCS[0]}, v{vA}"); e(f"v_and_b32 v{t}, {(16<<sh)-16}, v{vL16}"); e(f"v_add_u32 v{vA}, v{vA}, v{t}")
    e(f"v_and_b32 v{vS}, 32, v{vL16}"); e(f"v_and_b32 v{t}, 64, v{vL16}"); e(f"v_lshl_add_u32 v{vS}, v{t}, 2, v{vS}")
    e(f"v_bfe_u32 v{t}, v{vL16}, 8, 1"); e(f"v_lshl_add_u32 v{vS}, v{t}, 4, v{vS}"); e(f"v_bfe_u32 v{t}, v{vL16}, 4, 1"); e(f"v_lshl_add_u32 v{vS}, v{t}, 3, v{vS}")

def loop(g,e,p,opt,LS,LN,cold):
    w=p.w; diag=opt.get("diag"); PTS=opt.get("pts",["top","mem","b1","qke","sc","b2","sum","pv","b3","pcst","red","mst"])
    def stamp(n):
        if diag and n in PTS: i=PTS.index(n); e(f"s_mem{'real' if diag>1 else ''}time s[{STP+2*i}:{STP+2*i+1}]")
    def dly(k):
        n=opt.get(k+str(w),opt.get(k,0)); e.nop(n)
    def retry(back,pre=(),cnt=None):
        l=g.uniq("rt"); e(f"s_cbranch_vccnz {l}")
        def f():
            g.label(l)
            if diag and cnt is not None: g(f"s_add_u32 s{cnt}, s{cnt}, 1")
            for x in pre: g(x)
            timeout(g,back)
        cold.append(f)
    VQ=[]; vc=[0]; KN=opt.get("kn",""); TN=opt.get("tn",""); EN=opt.get("en","")
    def vq(blk,t):
        if VQ is not None and vc[0]>=0: VQ.append((blk,t))
        else: e(t)
    def pump(blk=None):
        if blk is None:
            vc[0]+=1
            if VQ and vc[0]%opt.get("sp",2)==0: e(VQ.pop(0)[1])
        else:
            while any(b==blk or blk=="all" for b,_ in VQ): e(VQ.pop(0)[1])
    def Bop(f,sl,i):
        if i in sl: pump(sl[i][0])
        if i in sl: b=B[sl[i][0]]; return f"v[{b}:{b+7}]"
        k,b=p.home[f]; return f"{k}[{b}:{b+7}]"
    def fill(f,blk,direct=False):
        if f=='Kx':
            vq(blk,f"buffer_load_dwordx4 {v4(B[blk])}, v{vL16}, {WS}, s{sKV} offen offset:{1024*w} sc1{KN}")
            vq(blk,f"s_add_u32 s3, s{sKV}, 4096\nbuffer_load_dwordx4 {v4(B[blk]+4)}, v{vL16}, {WS}, s3 offen offset:{1024*w} sc1{KN}")
        elif f=='Vx':
            for h in range(2): vq(blk,(f"s_add_u32 s3, s{sKV}, {VO-KQ+2048*w}\n" if h==0 else "")+f"buffer_load_dwordx4 {v4(B[blk]+4*h)}, v{vL16}, {WS}, s3 offen offset:{1024*h} sc1{KN}")
            if w in {4:(1,2),5:(1,)}.get(opt.get("touch"),()):
                vq(blk,f"v_lshlrev_b32 v{vT}, 3, v{vL16}"); vq(blk,f"s_add_u32 s3, s{sKV}, {(1<<19)+(VO-KQ)*(w-1)}\nbuffer_load_dword v{vT}, v{vT}, {WS}, s3 offen sc1{TN}")
        elif p.loc[f]=='L':
            for h in range(2):
                va,o=lds(p.lofs[f]+1024*h); e(f"ds_read_b128 {v4(B[blk]+4*h)}, v{va} offset:{o}")
        else:
            n=p.sidx[f]
            for h in range(2):
                z=2*p.dfr.index(f)+h if f in p.dfr and not direct else 99
                if z<len(p.zone): e.wait("dma"); e(f"ds_read_b128 {v4(B[blk]+4*h)}, v{vL16} offset:{p.zone[z]}")
                else: vq(blk,f"buffer_load_dwordx4 {v4(B[blk]+4*h)}, v{vL16}, {WS}, s{[sSTb,sST1,sST2][n//2]} offen offset:{2048*(n&1)+1024*h}")
    def zero(r): e(f"ds_read_b128 {v4(r)}, v{vW2} offset:{ZOFF}")
    def rdA(t,r): e(f"ds_read_b128 {v4(r)}, v{vL16} offset:{L_MEM+1024*t}")
    Q={b:[] for b in range(7)}
    for seq,sl in ((p.qk,p.slot),(p.vs,p.vslot)):
        for i in sorted(sl): Q[sl[i][0]].append(seq[i])
    Q[6].append('Kx'); Q[3].append('Vx')
    first={b:Q[b].pop(0) for b in (3,4,5,6)}
    def nxt(b):
        if Q[b]: fill(Q[b].pop(0),b)
    hop_a=opt.get("hop_a",[3,4,5]); hop_c=opt.get("hop_c",[]) if w<3 else []; hop_b=[b for b in (3,4,5,6) if b not in hop_a+hop_c]
    if LN=="f":
        for b in (3,4,5,6): fill(first[b],b,True)
        pump("all")
        for r in (0,4,8,12): zero(B[0]+r)
        e.waitall()
        e(f"s_cmp_lg_u32 s{sSlow}, 0"); e(f"s_cbranch_scc1 L_ch{w}_s")
    g.raw(".p2align 6")
    e.label(f"L_ch{w}_{LN}")
    stamp("top")
    own=OWN[w]; land=[B[2],B[2]+4,B[0]+4]
    lm=g.uniq("pm"); e(f"s_mov_b32 s{sTO}, 0"); e.label(lm)
    for n,t in enumerate(own):
        if n==2: e(f"s_add_u32 s3, s{sMl}, {(t-own[0])*1024}")
        e(f"buffer_load_dwordx4 {v4(land[n])}, v{vL16}, {WS}, {'s3' if n==2 else f's{sMl}'} offen offset:{1024*n if n<2 else 0} sc1")
    for n,t in enumerate(own):
        e(f"ds_write_b128 v{vL16}, {v4(land[n])} offset:{L_MEM+1024*t}",tag="mw")
        e(f"v_max_u32 v{vT}, v{land[n]}, v{land[n]+2}" if n==0 else f"v_max3_u32 v{vT}, v{vT}, v{land[n]}, v{land[n]+2}")
    e(f"v_cmp_eq_u32 vcc, -1, v{vT}")
    retry(lm,["s_nop 15"]*opt.get("rt_m",0),98)
    stamp("mem")
    if opt.get("touch",1)==3: e.waitall(vm=False)
    if len(own)==3: zero(land[2])
    Areg={p.order[s]:B[2]+4*(s&1) for s in range(10)}
    acc={'q':B[0],'k':B[1],'v':B[4]}
    b1=opt.get("b1",3)
    lastuse={f[1]:i for i,f in enumerate(p.qk)}
    last4=max(i for i in p.slot if p.slot[i][0]==4)
    for i,f in enumerate(p.qk):
        e(f"{SM} {v4(acc[f[0]]+4*f[2])}, {v4(Areg[f[1]])}, {Bop(f,p.slot,i)}, v{vIdx}")
        if i in p.slot and not (i<=b1 and p.slot[i][0]>=5): nxt(p.slot[i][0])
        if i==b1:
            e.wait("mw"); e("s_barrier"); stamp("b1")
            for b in (6,5): nxt(b)
        if lastuse[f[1]]==i:
            s=p.order.index(f[1])
            if s+2<10: rdA(p.order[s+2],Areg[f[1]])
        if i==last4: zero(B[4]); zero(B[4]+4)
        pump()
    stamp("qke")
    ring=[B[2],B[2]+4,B[5]+4]; vi=[0]
    rdA(p.vord[2],ring[2])
    def vm(n,fl=()):
        fl=list(fl)
        for _ in range(n):
            i=vi[0]; vi[0]+=1; f=p.vs[i]; s=i//2
            e(f"{SM} {v4(B[4]+4*f[2])}, {v4(ring[s%3])}, {Bop(f,p.vslot,i)}, v{vIdx}")
            if i in p.vslot: nxt(3)
            if i&1 and s+3<10: rdA(p.vord[s+3],ring[s%3])
            if fl: e(fl.pop(0))
            pump()
        for x in fl: e(x)
    G=opt.get("gaps",[2,0,3,7,8]); G5=20-sum(G); assert 0<=G5<=8
    SC=L_SCR+1024*w
    def post(a):
        for u in range(2):
            r=a+4*u
            e(f"v_add_f32 v{r}, v{r}, v{r+2}"); e(f"v_add_f32 v{r+1}, v{r+1}, v{r+3}"); e(f"v_cvt_pk_bf16_f32 v{r}, v{r}, v{r+1}")
    qop,kop=B[0]+4,B[1]+4
    def post2(a):
        for u in range(2):
            r=a+4*u
            e(f"v_add_f32 v{r}, v{r}, v{r+2}"); e(f"v_add_f32 v{r+3}, v{r+1}, v{r+3}"); e(f"v_cvt_pk_bf16_f32 v{r+1}, v{r}, v{r+3}"); e(f"v_cvt_pk_bf16_f32 v{r}, v{r}, v{r+3}")
        for u in range(2): e(f"{MF16} {v4(a+4*u)}, {v2(a+4*u)}, {v2(vTW)}, 0")
    def pack(a):
        for x in (3,2,1,0): e(f"v_cvt_pk_bf16_f32 v{a+4+x}, v{a+2*x}, v{a+2*x+1}")
    post2(B[0]); post2(B[1])
    vm(G[0]); pack(B[0])
    S,D1,Sm=B[0],B[1],B[5]
    pump(6)
    e(f"{MF} {v4(S)}, {v4(B[6])}, {v4(qop)}, 0"); pack(B[1]); vm(G[1]); e(f"{MF} {v4(D1)}, {v4(B[6]+4)}, {v4(qop)}, 0"); e(f"{MF} {v4(Sm)}, {v4(kop)}, {v4(qop)}, 0")
    stamp("sc")
    vm(G[2])
    for r in range(4): e(f"v_cndmask_b32 v{S+r}, v{S+r}, v{D1+r}, s[{mB1}:{mB1+1}]")
    e(f"ds_write_b128 v{vL16}, {v4(S)} offset:{SC}",tag="sw")
    e(f"ds_write_b64 v{vL16}, {v2(Sm)} offset:{L_MP+1024*(w>>1)+8*(w&1)}",tag="sw")
    vm(G[3])
    assert not Q[3], Q[3]
    pump("all"); vc[0]=-10**6
    e.wait("sw"); e("s_barrier"); stamp("b2")
    X=[B[6],B[6]+4,B[1]]
    for n,k in enumerate(x for x in range(4) if x!=w): e(f"ds_read_b128 {v4(X[n])}, v{vL16} offset:{L_SCR+1024*k}")
    Ma,Mb=B[0]+4,B[5]
    e(f"ds_read_b128 {v4(Ma)}, v{vL16} offset:{L_MP}"); e(f"ds_read_b128 {v4(Mb)}, v{vL16} offset:{L_MP+1024}")
    fl=[f"s_mov_b64 exec, s[{mB0}:{mB0+1}]\nbuffer_store_dwordx4 {v4(kop)}, v{vOW}, {WS}, s{sEX} offen offset:{512*w} sc1{EN}\ns_mov_b64 exec, -1"]
    if opt.get("noex"): fl=[]
    if w==2 and opt.get("touch",1)==1:
        fl+=[f"v_lshlrev_b32 v{vT}, 3, v{vL16}", f"s_add_u32 s3, s{sKV}, {1<<19}", f"buffer_load_dword v{vT}, {WS}, s3 offen sc1 lds\ns_add_u32 s3, s3, {VO-KQ}", f"buffer_load_dword v{vT}, {WS}, s3 offen sc1 lds"]
    flags=[f"v_mov_b32 v{vT}, 0", f"s_mov_b64 exec, 1\nbuffer_atomic_add v{vT}, off, {WS}, s{sCQ} sc0\ns_mov_b64 exec, 2\nbuffer_atomic_add v{vT}, off, {WS}, s{sAP} sc0 ;nodep\ns_mov_b64 exec, -1"]
    if opt.get("noat"): flags=[f"v_mov_b32 v{vT}, 0x64"]
    if w==3: fl+=flags
    late=[]
    if opt.get("late",1): late=fl; fl=[]
    vm(G[4],fl)
    pk=lambda d,a,b: e(f"v_pk_add_f32 {v2(d)}, {v2(a)}, {v2(b)}")
    for h in (0,2): pk(S+h,S+h,X[0]+h)
    for h in (0,2): pk(X[1]+h,X[1]+h,X[2]+h)
    pk(Ma,Ma,Ma+2); pk(Mb,Mb,Mb+2)
    for h in (0,2): pk(S+h,S+h,X[1]+h)
    pk(Sm,Ma,Mb)
    L_O=L_MEM; dm=[]
    if p.dfr:
        for z,o in enumerate(p.zone[:2*len(p.dfr)]):
            n=p.sidx[p.dfr[z//2]]; off=2048*(n&1)+1024*(z&1)
            assert o>=off
            dm.append((f"s_mov_b32 m0, {o-off}",f"buffer_load_dwordx4 v{vL16}, {WS}, s{[sSTb,sST1,sST2][n//2]} offen offset:{off} lds"))
    dw=dm; dm=[]
    if w==2 and opt.get("touch")==5: dm.append((f"v_lshlrev_b32 v{vT}, 3, v{vL16}\ns_add_u32 s3, s{sKV}, {(1<<19)+VO-KQ}",f"buffer_load_dword v{vT}, v{vT}, {WS}, s3 offen sc1{TN}"))
    def dmo(k):
        if dm: e(dm[0][k],tag="dma" if k else None)
        if dm and k: dm.pop(0)
    stamp("sum")
    Qo={6:[],2:[]}
    for i in sorted(p.oslot): Qo[p.oslot[i][0]].append(p.wo[i])
    Q.update(Qo)
    t0,t1,Mp,z,z1=B[5]+2,B[5]+3,B[5]+4,B[5]+6,B[5]+7
    Vm,O,Do,R=B[4],B[4]+2,B[4]+4,B[0]+4
    DP="row_mask:0xf bank_mask:0xf"
    vp=[f"v_add_f32 v{Vm}, v{Vm}, v{Vm+2}",f"v_add_f32 v{Vm+1}, v{Vm+1}, v{Vm+3}",f"v_add_f32 v{Vm+4}, v{Vm+4}, v{Vm+6}",f"v_add_f32 v{Vm+5}, v{Vm+5}, v{Vm+7}",
        f"v_cvt_pk_bf16_f32 v{Vm}, v{Vm}, v{Vm+1}",f"v_cvt_pk_bf16_f32 v{Vm+1}, v{Vm+4}, v{Vm+5}"]
    vq5=opt.get("g5",[2,2,2,2]); vl=[G5]
    def fil(n):
        if not G5: e(vp[2*n]); e(vp[2*n+1]); return
        k=min(vq5[n],vl[0]); vl[0]-=k; vm(k)
    e(f"v_max3_f32 v{t0}, v{S}, v{S+1}, v{S+2}"); e(f"v_max3_f32 v{t0}, v{t0}, v{S+3}, v{Sm}"); e(f"v_max_f32 v{t0}, v{t0}, v{Sm+1}")
    dmo(0); fil(0); dmo(1)
    e(f"v_max_f32_dpp v{t0}, v{t0}, v{t0} quad_perm:[2,3,0,1] {DP}")
    for n,sw in enumerate(("v_permlane16_swap_b32","v_permlane32_swap_b32")):
        dmo(0); e(f"v_mov_b32 v{t1}, v{t0}"); fil(1+n); dmo(1); e(f"{sw} v{t0}, v{t1}"); e(f"v_max_f32 v{t0}, v{t0}, v{t1}")
    e(f"v_mul_f32 v{t0}, s{sC1}, v{t0}")
    if G5: fil(3); assert not vl[0]
    ER=[Sm,Sm+1,S,S+1,S+2,S+3]
    for r in ER: e(f"v_fma_f32 v{r}, v{r}, s{sC1}, -v{t0}")
    exs=f"buffer_store_dwordx2 {v2(Vm)}, v{t1}, {WS}, s{sEX} offen offset:{2048+512*w} sc1{EN}"
    for n,r in enumerate(ER):
        e(f"v_exp_f32 v{r}, v{r}")
        if G5: e(vp[n])
        if n==0: e(f"v_lshrrev_b32 v{t1}, 1, v{vL16}")
        if n==0: dmo(0)
        if n==2: dmo(1)
        if n==1: nxt(6)
        if n==3: nxt(2)
        if n==4:
            for x in late: e(x)
        if n==(5 if G5 else 4) and not opt.get("noex"): e(exs)
    P1,P2=B[1],B[1]+4
    cm=lambda d,s_,m: e(f"v_cndmask_b32 v{d}, 0, v{s_}, s[{m}:{m+1}]")
    e(f"v_cvt_pk_bf16_f32 v{R+2}, v{Sm}, v{Sm+1}"); e(f"v_cvt_pk_bf16_f32 v{R}, v{S}, v{S+1}"); e(f"v_cvt_pk_bf16_f32 v{R+1}, v{S+2}, v{S+3}")
    cm(Mp,R+2,mB0); cm(Mp+1,R+2,mB1)
    cm(P2+2,R,mB1); cm(P2+3,R+1,mB1)
    e(f"{MF16} {v4(Do)}, {v2(Vm)}, {v2(Mp)}, 0")
    cm(P1,R,mB0); cm(P1+1,R+1,mB0)
    for h in range(2): e(f"v_mov_b32_dpp v{P1+2+h}, v{P2+2+h} quad_perm:[2,3,0,1] {DP}")
    for h in range(2): e(f"v_mov_b32_dpp v{P2+h}, v{P1+h} quad_perm:[2,3,0,1] {DP}")
    e(f"{MF} {v4(Do)}, {v4(B[3])}, {v4(P1)}, {v4(Do)}")
    e(f"v_add_f32 v{z}, v{S}, v{S+1}"); e(f"v_add_f32 v{z1}, v{Sm}, v{Sm+1}")
    e(f"{MF} {v4(Do)}, {v4(B[3]+4)}, {v4(P2)}, {v4(Do)}")
    stamp("pv")
    OA=[B[1],B[1]+4,B[3],B[3]+4,B[0]]
    e(f"v_add_f32 v{z}, v{z}, v{S+2}"); e(f"v_fma_f32 v{z1}, v{z1}, 0.5, v{S+3}"); e(f"v_add_f32 v{z}, v{z}, v{z1}")
    zero(OA[0]); zero(OA[1])
    e(f"v_add_f32_dpp v{z}, v{z}, v{z} quad_perm:[2,3,0,1] {DP}")
    e(f"v_mov_b32 v{z1}, v{z}"); zero(OA[2]); zero(OA[3]); e(f"v_permlane16_swap_b32 v{z}, v{z1}"); e(f"v_add_f32 v{z}, v{z}, v{z1}")
    e(f"v_mov_b32 v{z1}, v{z}"); zero(OA[4]); e(f"s_cmp_eq_u32 s{sT}, 63"); e(f"v_permlane32_swap_b32 v{z}, v{z1}"); e(f"v_add_f32 v{z}, v{z}, v{z1}")
    e(f"v_rcp_f32 v{z}, v{z}")
    e(f"s_cbranch_scc1 L_ch{w}_end")
    for h in (0,2):
        e(f"v_mul_f32 v{Do+h}, v{Do+h}, v{z}"); e(f"v_mul_f32 v{Do+h+1}, v{Do+h+1}, v{z}"); e(f"v_cvt_pk_bf16_f32 v{O+h//2}, v{Do+h}, v{Do+h+1}")
    e(f"ds_write_b64 v{vOW}, {v2(O)} offset:{L_O+512*w}",tag="ow")
    assert not dm
    e(f"v_and_b32 v{Vm}, -9, v{vOW}")
    ks=[w]+[k for k in range(4) if k!=w]
    AO=dict(zip(ks,[B[0]+4,B[5],B[5]+4,B[4]+4]))
    for h in range(2): e(f"v_mov_b32_dpp v{AO[w]+h}, v{O+h} quad_perm:[0,1,0,1] {DP}"); e(f"v_mov_b32_dpp v{AO[w]+2+h}, v{O+h} quad_perm:[2,3,2,3] {DP}")
    b3=opt.get("b3",1)
    tagv=lambda r: f"v_and_or_b32 v{r}, v{r}, -2, s{sTag}"
    def out(dt,d):
        a=OA[dt]; return [f"v_cvt_pk_bf16_f32 v{d}, v{a}, v{a+1}",f"v_cvt_pk_bf16_f32 v{d+1}, v{a+2}, v{a+3}",tagv(d)]
    pend=[]; lastw={f[1]:i for i,f in enumerate(p.wo)}
    def ready(dt):
        pend.extend(out(dt,OA[dt&~1]+2*(dt&1)))
        if dt&1: pend[-1]+=f"\nbuffer_store_dwordx4 {v4(OA[dt-1])}, v{vL16}, {WS}, s{sPCw} offen offset:{1024*(dt>>1)}{LS}"
        if dt==4: pend[-1]+=f"\nbuffer_store_dwordx2 {v2(OA[4])}, v{vL16}, {WS}, s{sMo} offen offset:{8*(w&1)}{LS}"
    for i,f in enumerate(p.wo):
        e(f"{SM} {v4(OA[f[1]])}, {v4(AO[f[2]])}, {Bop(f,p.oslot,i)}, v{vIdx}")
        if i in p.oslot: nxt(p.oslot[i][0])
        if i==b3:
            e.wait("ow"); e("s_barrier"); stamp("b3")
            for k in ks[1:]: e(f"ds_read_b128 {v4(AO[k])}, v{Vm} offset:{L_O+512*k}")
        if i==b3: dm+=dw
        if i>=opt.get("d0",2): dmo((i-opt.get("d0",2))&1)
        for dt in range(5):
            if i==min(lastw[dt]+3,19): ready(dt)
        if pend: e(pend.pop(0))
    for x in pend: e(x)
    stamp("pcst")
    for b in hop_a:
        if b not in opt.get("xs",[]): fill(first[b],b)
    e(f"s_add_u32 s{sT}, s{sT}, 1"); e(f"s_add_u32 s{sKV}, s{sKV}, {0 if opt.get('kvsame') else 1<<19}")
    e(f"s_and_b32 s3, s{sT}, {NEX-1}"); e(f"s_cselect_b32 s3, 1, {-(NEX-1)}"); e("s_lshl_b32 s3, s3, 17"); e(f"s_add_u32 s{sEX}, s{sEX}, s3")
    e(f"s_and_b32 s3, s{sT}, 3"); e("s_cselect_b32 s3, 1, -3"); e("s_lshl_b32 s3, s3, 14"); e(f"s_add_u32 s{sMr}, s{sMr}, s3"); e(f"s_add_u32 s{sMl}, s{sMl}, s3"); e(f"s_xor_b32 s{sMw}, s{sMr}, 32768")
    if opt.get("touch",1)==3:
        for i in range(opt.get("nsm",12)): e(f"s_buffer_load_dword s101, {WS}, s{sKV} offset:{2048*w+128*i}")
    if w<3:
        vA,vS,ac,sel=B[6],B[6]+1,B[2],B[2]+4
        tq=B[6]+4
        red_addr(e,w,vA,vS,tq)
        e(f"v_mov_b32 v{tq}, 0x3f80"); e(f"v_mov_b32 v{sel}, 0x3f800000"); e(f"v_cndmask_b32 v{tq}, v{tq}, v{sel}, s[{mP}:{mP+1}]")
        for r in range(4): cm(sel+r,tq,mSel+2*r)
        e(f"v_mov_b64 {v2(B[6]+2)}, -1")
        e(f"s_mov_b64 exec, s[{mSt}:{mSt+1}]"); e(f"buffer_store_dwordx2 {v2(B[6]+2)}, v{vS}, {WS}, s{sMw} offen{LS}"); e("s_mov_b64 exec, -1")
        dly("dly_pc")
        lp=g.uniq("pp"); e(f"s_mov_b32 s{sTO}, 0")
        n=4 if w<2 else 2
        pl=[f"buffer_load_dwordx4 {v4(B[0]+4*i)}, v{vA}, {WS}, s{sPCr+i} offen sc1" for i in range(n)]
        for x in pl: e(x)
        dly("dly_c")
        for b in hop_c: fill(first[b],b)
        dbl=opt.get("dbl",0); nset=(2 if w<2 else opt.get("dbl2",2)) if dbl else 1
        for k in range(1,nset):
            e.nop(dbl if nset==2 else opt.get("dbl3",dbl//2))
            for i in range(n): e(f"buffer_load_dwordx4 {v4(B[4]+8*(k-1)+4*i)}, v{vA}, {WS}, s{sPCr+i} offen sc1")
        def proc(em,base):
            for i in range(n):
                d=base+4*i
                em(f"{MF} {v4(ac)}, {v4(sel)}, {v4(d)}, {'0' if i==0 else v4(ac)}")
                em(f"v_bitop3_b32 v{B[6]+4+i}, v{d}, v{d+2}, s{sTag} bitop3:0x7e")
            if n==4: em(f"v_or3_b32 v{vT}, v{B[6]+4}, v{B[6]+5}, v{B[6]+6}"); em(f"v_bitop3_b32 v{vT}, v{vT}, v{B[6]+7}, 1 bitop3:0xa8")
            else: em(f"v_bitop3_b32 v{vT}, v{B[6]+4}, v{B[6]+5}, 1 bitop3:0xa8")
            em(f"v_cmp_ne_u32 vcc, 0, v{vT}")
        if dbl:
            proc(e,B[0])
            l2=g.uniq("p2"); lq=g.uniq("pq"); e(f"s_cbranch_vccnz {l2}"); e.label(lq)
            def f2():
                g.label(l2)
                for k in range(1,nset):
                    if diag: g("s_add_u32 s98, s98, 1")
                    g(f"s_waitcnt vmcnt({n*(nset-1-k)})"); proc(g,B[4]+8*(k-1)); g("s_nop 0"); g(f"s_cbranch_vccz {lq}")
                g.label(lp)
                if diag: g("s_add_u32 s99, s99, 1")
                for x in pl: g(x)
                g("s_waitcnt vmcnt(0)"); proc(g,B[0]); g("s_nop 0"); g(f"s_cbranch_vccz {lq}")
                timeout(g,lp)
            cold.append(f2)
        else:
            e.label(lp); proc(e,B[0])
            retry(lp,["s_nop 15"]*opt.get("rt_p",0)+pl+(["s_waitcnt vmcnt(0)"] if hop_c else []),99)
        stamp("red")
        for rot in ((8,) if w<2 else (8,4)):
            for r in range(4): e(f"v_add_f32_dpp v{ac+r}, v{ac+r}, v{ac+r} row_ror:{rot} {DP}")
        e(f"s_mov_b64 exec, s[{mSt}:{mSt+1}]")
        e(f"v_cvt_pk_bf16_f32 v{ac}, v{ac}, v{ac+1}"); e(f"v_cvt_pk_bf16_f32 v{ac+1}, v{ac+2}, v{ac+3}")
        e(f"buffer_store_dwordx2 {v2(ac)}, v{vS}, {WS}, s{sMr} offen{LS}")
        e("s_mov_b64 exec, -1")
        stamp("mst")
    else:
        lf=g.uniq("fl"); lr=g.uniq("fr"); e(f"s_mov_b32 s{sTO}, 0"); e.label(lf)
        e(f"v_readlane_b32 s{sA}, v{vT}, 0"); e(f"v_readlane_b32 s{sB}, v{vT}, 1"); e("s_nop 3")
        e(f"s_cmp_lt_u32 s{sA}, 8"); e(f"s_cbranch_scc1 {lr}")
        e(f"s_add_u32 s{sB}, s{sB}, {NEX}"); e(f"s_cmp_le_u32 s{sB}, s{sT}"); e(f"s_cbranch_scc1 {lr}")
        def f():
            g.label(lr)
            if diag: g("s_add_u32 s99, s99, 1")
            g(f"s_sleep {opt.get('fl_sleep',4)}")
            for x in flags: g(x)
            g("s_waitcnt vmcnt(0)")
            timeout(g,lf)
        cold.append(f)
        e(f"s_add_u32 s{sCQ}, s{sCQ}, 4")
        stamp("red"); dly("dly_w3"); stamp("mst")
    e(f"s_xor_b32 s{sTag}, s{sTag}, 1")
    if opt.get("dbl"):
        fill(first[6],6); hop_b.remove(6)
        for r in ((0,4,8,12) if len(own)==2 else (0,8,12)): zero(B[0]+r)
        dly("dly_mem")
    for b in hop_b:
        if b not in opt.get("xs",[]): fill(first[b],b)
    for r in (() if opt.get("dbl") else (0,4,8,12) if len(own)==2 else (0,8,12)): zero(B[0]+r)
    if opt.get("touch",1)!=3 or diag: e.waitall(vm=False)
    if diag and diag>1:
        l=g.uniq("dg"); e(f"s_cmp_lg_u32 s{sT}, {opt.get('dstep',diag)}"); e(f"s_cbranch_scc1 {l}")
        for i in range(len(PTS)): e(f"s_mov_b32 s{ACC+i}, s{STP+2*i}")
        e.label(l)
    elif diag:
        l=g.uniq("dg"); e(f"s_sub_u32 s3, s{sT}, 9"); e("s_cmp_ge_u32 s3, 50"); e(f"s_cbranch_scc1 {l}")
        for i in range(1,len(PTS)): e(f"s_sub_u32 s3, s{STP+2*i}, s{STP}"); e(f"s_add_u32 s{ACC+i}, s{ACC+i}, s3")
        e(f"s_sub_u32 s3, s{STP}, s17"); e(f"s_add_u32 s{ACC}, s{ACC}, s3")
        e.label(l); e(f"s_mov_b32 s17, s{STP}")
    if opt.get("ldiag"):
        for tv,sr_ in ((8,18),(60,22)):
            l=g.uniq("lt"); e(f"s_cmp_lg_u32 s{sT}, {tv}"); e(f"s_cbranch_scc1 {l}")
            e(f"s_memrealtime s[{sr_}:{sr_+1}]"); e(f"s_memtime s[{sr_+2}:{sr_+3}]"); e("s_waitcnt lgkmcnt(0)"); e.label(l)
    if not opt.get("dbl"): dly("dly_mem")
    e(f"s_branch L_ch{w}_{LN}")
    e.vm=[]; e.ds=[]

def chain(g,opt,start):
    g.label("L_ch"); PCS[0]=opt.get("pcs",10240)
    if opt.get("ldiag") or opt.get("diag"): g("s_memrealtime s[96:97]"); g("s_waitcnt lgkmcnt(0)"); g("s_mov_b32 s100, s96")
    g(f"s_mov_b32 s{sH}, s{sTK}")
    g(f"s_lshl_b32 s{sA}, s{sLam}, 5"); g(f"s_add_u32 s{sA}, s{sA}, s{sH}")
    g(f"s_mul_i32 s{sSTb}, s{sA}, {4*opt.get('sts',16384)}"); g(f"s_mul_i32 s3, s{sW}, {opt.get('sts',16384)}"); g(f"s_add_u32 s{sSTb}, s{sSTb}, s3"); g(f"s_add_u32 s{sSTb}, s{sSTb}, {ST}"); g(f"s_add_u32 s{sST1}, s{sSTb}, 4096"); g(f"s_add_u32 s{sST2}, s{sSTb}, 8192")
    g(f"s_mul_i32 s{sPCw}, s{sA}, {PCS[0]}"); g(f"s_lshl_b32 s3, s{sW}, 11"); g(f"s_add_u32 s{sPCw}, s{sPCw}, s3"); g(f"s_add_u32 s{sPCw}, s{sPCw}, {PC}")
    g(f"s_lshl_b32 s{sCQ}, s{sA}, 8"); g(f"s_add_u32 s{sCQ}, s{sCQ}, {CQKV}")
    g(f"s_lshl_b32 s{sAP}, s{sA}, 7"); g(f"s_add_u32 s{sAP}, s{sAP}, {APG}")
    g(f"s_mul_i32 s{sEX}, s{sLam}, {NEX*32*4096}"); g(f"s_lshl_b32 s3, s{sH}, 12"); g(f"s_add_u32 s{sEX}, s{sEX}, s3"); g(f"s_add_u32 s{sEX}, s{sEX}, {EX}")
    g(f"s_and_b32 s3, s{sH}, 1"); g("s_lshl_b32 s3, s3, 13"); g(f"s_lshl_b32 s{sKV}, s{sH}, 14"); g(f"s_add_u32 s{sKV}, s{sKV}, s3")
    g(f"s_mul_i32 s3, s{sLam}, {LST}"); g(f"s_add_u32 s{sKV}, s{sKV}, s3"); g(f"s_add_u32 s{sKV}, s{sKV}, {KQ}")
    g(f"s_mov_b32 s{sC1}, {hex(f32bits(128**-0.5*math.log2(math.e)))}"); g(f"s_mov_b32 s{sT}, 0"); g(f"s_mov_b32 s{sTag}, 1")
    for m,val in ((mB0,0x33333333),(mB1,0xcccccccc),(mSel,0x11111111),(mSel+2,0x44444444),(mSel+4,0x22222222),(mSel+6,0x88888888),(mP,0xf0f0f0f0)):
        g(f"s_mov_b32 s{m}, {hex(val)}"); g(f"s_mov_b32 s{m+1}, {hex(val)}")
    for w in range(1,4): g(f"s_cmp_eq_u32 s{sW}, {w}"); g(f"s_cbranch_scc1 L_ch{w}")
    for w in range(4):
        g.label(f"L_ch{w}")
        e=E(g); p=Plan(w,opt); cold=[]
        init(e,p,opt)
        e(f"v_lshlrev_b32 v{vL8}, 3, v0")
        e(f"v_and_b32 v{vOW}, 0x1e0, v{vL8}"); e(f"v_and_b32 v{vT}, 1, v0"); e(f"v_lshl_add_u32 v{vOW}, v{vT}, 4, v{vOW}"); e(f"v_and_b32 v{vT}, 2, v0"); e(f"v_lshl_add_u32 v{vOW}, v{vT}, 2, v{vOW}")
        e(f"v_bfe_u32 v{vTW}, v0, 2, 2"); e(f"v_lshrrev_b32 v{vT}, 4, v0"); e(f"v_cmp_eq_u32 vcc, v{vTW}, v{vT}"); e(f"v_and_b32 v{vT}, 16, v{vL16}")
        e(f"v_mov_b32 v{vL8}, 0x3f80"); e(f"v_lshlrev_b32 v{vT}, v{vT}, v{vL8}"); e(f"v_cndmask_b32 v{vTW}, 0, v{vT}, vcc"); e(f"v_mov_b32 v{vL8}, 0")
        e(f"s_lshl_b32 s{sMl}, s{sLam}, 16"); e(f"s_add_u32 s{sMl}, s{sMl}, {MEM}")
        e(f"s_mul_i32 s{sB}, s{sLam}, {32*PCS[0]}"); e(f"s_add_u32 s{sB}, s{sB}, {PC}")
        if w<2:
            e(f"s_lshl_b32 s3, s{sH}, 8"); e(f"s_add_u32 s{sB}, s{sB}, s3")
            for i in range(4): e(f"s_add_u32 s{sPCr+i}, s{sB}, {128*w+8*PCS[0]*i}")
            e(f"s_lshr_b32 s{sA}, s{sH}, 2"); e(f"s_and_b32 s{sB}, s{sH}, 3"); e(f"s_mov_b32 s{sMo}, {2*w}")
            e(f"s_mov_b32 s{mSt}, 0x00ff00ff")
        else:
            e(f"s_lshl_b32 s3, s{sH}, 6"); e(f"s_add_u32 s{sB}, s{sB}, s3")
            for i in range(2): e(f"s_add_u32 s{sPCr+i}, s{sB}, {8192+16*PCS[0]*i}")
            e(f"s_lshr_b32 s{sA}, s{sH}, 4"); e(f"s_add_u32 s{sA}, s{sA}, 8"); e(f"s_bfe_u32 s{sB}, s{sH}, 0x20002"); e(f"s_and_b32 s{sMo}, s{sH}, 3")
            e(f"s_mov_b32 s{mSt}, 0x000f000f")
        e(f"s_mov_b32 s{mSt+1}, 0")
        e(f"s_lshl_b32 s{sMr}, s{sA}, 10"); e(f"s_lshl_b32 s3, s{sB}, 6"); e(f"s_add_u32 s{sMr}, s{sMr}, s3"); e(f"s_lshl_b32 s3, s{sMo}, 8"); e(f"s_add_u32 s{sMr}, s{sMr}, s3"); e(f"s_add_u32 s{sMr}, s{sMr}, s{sMl}")
        e(f"s_add_u32 s{sMl}, s{sMl}, {1024*OWN[w][0]}")
        if w<3:
            e(f"s_lshl_b32 s{sA}, s{sA}, 7"); e(f"s_mul_i32 s{sB}, s{sB}, 2560"); e(f"s_add_u32 s{sA}, s{sA}, s{sB}"); e(f"s_lshl_b32 s3, s{sMo}, 3"); e(f"s_add_u32 s{sA}, s{sA}, s3")
            srd(e,8,18,8*1280)
            e("v_bfe_u32 v40, v0, 4, 1"); e("v_mul_u32_u24 v40, 1280, v40"); e("v_and_b32 v41, 7, v0"); e("v_lshl_add_u32 v40, v41, 1, v40")
            for x in range(4): e(f"buffer_load_ushort v{44+x}, v40, {WT}, s{sA} offen offset:{32*x}")
            red_addr(e,w,42,43,vT)
            e("v_lshl_or_b32 v44, v45, 16, v44"); e("v_lshl_or_b32 v45, v47, 16, v46")
        e(f"s_add_u32 s{sMo}, s{sPCw}, {(8+w//2-2*w)*1024}")
        e.waitall()
        start(g,e,w)
        if w<3:
            e(f"s_mov_b64 exec, s[{mSt}:{mSt+1}]"); e(f"buffer_store_dwordx2 v[44:45], v43, {WS}, s{sMr} offen sc1"); e("s_mov_b64 exec, -1")
        else:
            lp=g.uniq("f0"); ld=g.uniq("f0d"); e(f"s_mov_b32 s{sTO}, 0"); e.label(lp)
            e(f"v_mov_b32 v{vT}, 0"); e("s_mov_b64 exec, 1"); e(f"buffer_atomic_add v{vT}, off, {WS}, s{sCQ} sc0"); e("s_mov_b64 exec, -1")
            e(f"v_readfirstlane_b32 s3, v{vT}"); e("s_nop 3"); e("s_cmp_ge_u32 s3, 8"); e(f"s_cbranch_scc1 {ld}"); e("s_sleep 8"); timeout(e,lp); e.label(ld)
            e(f"s_add_u32 s{sCQ}, s{sCQ}, 4")
        e(f"v_and_b32 v{vT}, 2, v0"); e(f"v_mul_u32_u24 v{vT}, 0x5555, v{vT}"); e(f"v_add_u32 v{vIdx}, 0x4444, v{vT}")
        e(f"s_mov_b32 m0, {L_MEM+2048}")
        if opt.get("diag"):
            for i in range(ACC,100): e(f"s_mov_b32 s{i}, 0")
        if opt.get("ldiag"): e("s_memrealtime s[26:27]")
        e.waitall(); e("s_barrier")
        for LS,LN in (("","f"),(" sc1","s")):
            c0=dict(e.cnt); loop(g,e,p,opt,LS,LN,cold)
            if LN=="s" and opt.get("cnt"): print(w,{k:e.cnt[k]-c0.get(k,0) for k in e.cnt})
            while cold: cold.pop(0)()
        g.label(f"L_ch{w}_end")
        if opt.get("diag") or opt.get("ldiag"):
            g("s_memrealtime s[28:29]"); g("s_waitcnt lgkmcnt(0)")
            if opt.get("ldiag"):
                g("s_sub_u32 s86, s22, s18"); g("s_sub_u32 s87, s24, s20"); g("s_sub_u32 s88, s26, s100"); g("s_sub_u32 s89, s28, s100"); g("s_mov_b32 s90, s100")
            g(f"s_lshl_b32 s3, s{sLam}, 5"); g(f"s_add_u32 s3, s3, s{sH}"); g("s_lshl_b32 s3, s3, 8"); g(f"s_add_u32 s3, s3, {DBG+64*w}")
            for i in range(14): g(f"v_mov_b32 v{8+i}, s{ACC+i}")
            g("s_mov_b64 exec, 1")
            for i in range(4): g(f"buffer_store_dwordx4 {v4(8+4*i)}, off, {WS}, s3 offset:{16*i}")
        g("s_waitcnt vmcnt(0)")
        g("s_endpgm")
```
